```python
import torch

def _softmax(x, axis=-1):
    return torch.softmax(x, dim=axis)
def _gelu(x):
    return torch.nn.functional.gelu(x, approximate="tanh")
def _silu(x):
    return torch.nn.functional.silu(x)
def _sigmoid(x):
    return torch.sigmoid(x)
def _layernorm(x, axis=-1, eps=1e-5):
    m = x.mean(dim=axis, keepdim=True)
    v = x.var(dim=axis, keepdim=True, unbiased=False)
    return (x - m) / torch.sqrt(v + eps)
def _scatter_add(tgt, idx, src, axis=0):
    return tgt.clone().index_add_(axis, idx, src)
def _segment_sum(src, seg, n):
    out = torch.zeros((n,) + src.shape[1:], dtype=src.dtype)
    return out.index_add_(0, seg, src)
def _pad(x, pw):
    flat = tuple(v for pair in reversed(pw) for v in pair)
    return torch.nn.functional.pad(x, flat)

kernel_name = 'standalone__linear_kernel_rfa__decode'

def setup_inputs():

    _w = (lambda a: (lambda t: t.to(torch.bfloat16) if t.is_floating_point() else t)(torch.as_tensor(a)))
    B, H, Sq, Sk, D, M = 4, 32, 1, 8192, 128, 8
    return {
        "q": _w((lambda *s: torch.randn(*s, dtype=torch.bfloat16) * 0.05)(B, H, Sq, D)),
        "k": _w((lambda *s: torch.randn(*s, dtype=torch.bfloat16) * 0.4)(B, H, Sk, D)),
        "v": _w((lambda *s: torch.randn(*s, dtype=torch.bfloat16) * 0.4)(B, H, Sk, D)),
        "omega": _w((lambda *s: torch.randn(*s, dtype=torch.bfloat16) * 0.8)(M, D)),
    }

def reference(q, k, v, omega):
    d = q.shape[-1]
    m = omega.shape[0]
    scale = float(d) ** -0.25
    qs = q * scale
    ks = k * scale
    q_proj = torch.einsum("bhsd,md->bhsm", qs, omega)
    k_proj = torch.einsum("bhsd,md->bhsm", ks, omega)
    q_sq = 0.5 * torch.einsum("bhsd,bhsd->bhs", qs, qs)[..., None]
    k_sq = 0.5 * torch.einsum("bhsd,bhsd->bhs", ks, ks)[..., None]
    inv_sqrt_m = float(m) ** -0.5
    phi_q = torch.exp(q_proj - q_sq) * inv_sqrt_m + 1e-6
    phi_k = torch.exp(k_proj - k_sq) * inv_sqrt_m + 1e-6
    kv = torch.einsum("bhsm,bhsd->bhmd", phi_k, v)
    z  = torch.einsum("bhsm->bhm", phi_k)
    num = torch.einsum("bhqm,bhmd->bhqd", phi_q, kv)
    den = torch.einsum("bhqm,bhm->bhq", phi_q, z)[..., None] + 1e-6
    return num / den
```

```python
import sys, struct
KN = "standalone__linear_kernel_rfa__decode_kernel"
def f2u(x): return struct.unpack("<I", struct.pack("<f", x))[0]
SCALE = 128.0 ** -0.25
LOG2E = 1.4426950408889634
C1 = SCALE * LOG2E
C2 = -0.5 * SCALE * SCALE * LOG2E
HEADER = """; Linear (random-feature) attention, decode step:
; Kernarg layout (56 bytes, pointers only, base s[0:1]):
;   K stream: S = K omega^T on the matrix unit, |k|^2 with dot products, phi(K) rounded to bf16 and kept in LDS, z += phi(K)^T 1.
;   V stream: starts when the wave's K stream ends. Rows are transposed with v_perm and multiplied by phi(K) on the matrix unit.
;             (eight sample waves post how they stand against a nominal clock line, which centres that line on this launch)
;             asks for its next tiles with large requests only and catches up. Nothing ever waits for the clock; the values
;        workspace: 16-byte granules {num, num, den, tag ^ the three}, the tag being agreed on through debug[0] in every launch.
"""
class Asm:
    def __init__(s): s.L = []
    def __call__(s, t): s.L.append(t)
    def text(s): return "\n".join(s.L) + "\n"

def gen(fn, stamps=False, cls='d', kfirst='M', vfirst='X', fl="nt", comments=True, waves=4, D=4, DK=None, spread=False, light=False, nodot=False, kinds=None, look2=True, ctl='on', theta=30, qmul=41, cmax=4, forced=None, mincnt=96, nostore=False, noload=False, stfl='sc1', pad=8, kd=0, vd=0, jl=17, tmax=28, e0=380, bk=218, bv=209, js=29, th2=None, startbig=True, dbglate=False, recen=(), cap=None, ths=None, bits=None, ths1=None):
    NWG = 256
    NT = 256 // waves
    STEP = 32768 * (waves // 4)
    DK = DK or D
    NS = D // 2
    NSK = DK // 2
    a = Asm()
    def cm(t):
        if comments: a("    ; " + t)
    PBASE, PWAVE = 0, NT * 256
    assert waves == 4 and D == 4 and DK == 4 and kfirst == 'M' and vfirst == 'X'
    KBASE, KWAVE = 65536, 16384
    CTL = KBASE + waves * KWAVE
    LDS = CTL + 64
    assert LDS <= 163840 and KWAVE >= 2176
    a(HEADER + f"; @launch grid=({NWG},1,1) block=({waves*64},1,1) lds={LDS}")
    a('.amdgcn_target "amdgcn-amd-amdhsa--gfx950"\n.text')
    a(f".globl {KN}\n.p2align 8\n.type {KN},@function\n{KN}:")
    vLANE, vKO, vVO, vT0, vT1, vT2, vT3 = 1, 2, 3, 4, 5, 6, 7
    vOM, vACC_C, vACC_X, vZ, vS, vT, vCC, vPQ = 8, 24, 56, 88, 92, 96, 100, 104
    vP = [108, 110]; vONE = 112; vSQ0, vSQ1, vCB, vXO = 114, 115, 116, 117
    vL, vR, vPW, vPR, vX, vBT, vLOOK, vFLAG = 118, 122, 126, 127, 128, 132, 148, 152
    vM = [156, 172]; vC = [188, 204]; vLT = 220
    vROW = 236
    nv = 244
    def r4(b): return f"v[{b}:{b+3}]"
    def r2(b): return f"v[{b}:{b+1}]"
    sK, sV, sOM, sQ, sWS, sDB = 20, 24, 28, 32, 44, 48
    sOK, sOV, sW, sCNT, sLB, sSELLO, sSELHI, sC1, sEPS = 36, 39, 37, 38, 53, 40, 41, 42, 43
    sOWN, sPAR, sTAG = 52, 54, 55
    WSP = 1 << 20
    TBL = WSP + 256 * 1024
    sCRED, sF, sOLD, sJ, sTM, sTMP, sC1p, sC2p, sROW = 57, [58, 59], 78, 79, 80, 81, 82, 83, 84
    sX0, sX1 = 85, 86
    sTOT = 87
    sCAP = 93
    BIAS = 1 << 20
    def srd(b): return f"s[{b}:{b+3}]"
    def stamp(i):
        if stamps: a(f"s_memrealtime s[60:61]\ns_waitcnt lgkmcnt(0)\ns_mov_b32 s{64+i}, s60")
    if stamps: a("s_memrealtime s[62:63]")
    a("s_load_dwordx8 s[4:11], s[0:1], 0\ns_load_dwordx4 s[12:15], s[0:1], 32\ns_load_dwordx2 s[16:17], s[0:1], 48")
    cm("workgroups past the data leave at once")
    a(f"s_cmp_ge_u32 s2, {NWG}\ns_cbranch_scc1 L_done")
    a(f"v_lshrrev_b32 v{vT0}, 6, v0\nv_and_b32 v{vLANE}, 63, v0")
    a(f"v_and_b32 v{vT1}, 15, v{vLANE}")
    a(f"v_lshrrev_b32 v{vT2}, 4, v{vLANE}")
    a(f"v_readfirstlane_b32 s{sW}, v{vT0}")
    cm("K (direct) lane offset: key(i)*256 + g*16 with key(i) = 4*(i&3) + (i>>2)")
    a(f"v_and_b32 v{vT0}, 3, v{vT1}\nv_lshlrev_b32 v{vT3}, 10, v{vT0}\nv_lshrrev_b32 v{vX}, 2, v{vT1}\nv_lshlrev_b32 v{vX+1}, 8, v{vX}")
    a(f"v_lshlrev_b32 v{vX+2}, 4, v{vT2}\nv_add3_u32 v{vKO}, v{vT3}, v{vX+1}, v{vX+2}")
    a(f"v_lshlrev_b32 v{vVO}, 4, v{vLANE}")
    cm("head, half and first tile offset")
    a("s_lshr_b32 s3, s2, 1")
    if not bits:
        a(f"s_and_b32 s18, s2, 1\ns_lshl_b32 s{sOK}, s3, 21")
        pb, w0b, w1b = {'d': (12, 13, 14), 'a': (14, 12, 13)}[cls]
        a(f"s_lshl_b32 s18, s18, {pb}\ns_add_u32 s{sOK}, s{sOK}, s18\ns_and_b32 s18, s{sW}, 1\ns_lshl_b32 s18, s18, {w0b}\ns_add_u32 s{sOK}, s{sOK}, s18")
        a(f"s_bfe_u32 s18, s{sW}, 0x10001\ns_lshl_b32 s18, s18, {w1b}\ns_add_u32 s{sOK}, s{sOK}, s18")
        a(f"s_mov_b32 s{sOV}, s{sOK}")
    sHB, sTK, sTV, sPP = 96, 97, 98, 99
    t_part = []
    if bits:
        a(f"s_lshl_b32 s{sHB}, s3, 21\ns_and_b32 s{sPP}, s2, 1")
        for i, b in enumerate(bits):
            if b[0] == 't': t_part.append((int(b[1]), 12 + i))
            else:
                src = {'p': f"s_mov_b32 s18, s{sPP}", 'w0': f"s_and_b32 s18, s{sW}, 1", 'w1': f"s_bfe_u32 s18, s{sW}, 0x10001"}[b]
                a(f"{src}\ns_lshl_b32 s18, s18, {12+i}\ns_add_u32 s{sHB}, s{sHB}, s18")
        a(f"s_mov_b32 s{sTK}, 0\ns_mov_b32 s{sTV}, 0\ns_mov_b32 s{sOK}, s{sHB}\ns_mov_b32 s{sOV}, s{sHB}")
        runs = []
        for tb, ab in sorted(t_part):
            if runs and runs[-1][0] + runs[-1][2] == tb and runs[-1][1] + runs[-1][2] == ab: runs[-1][2] += 1
            else: runs.append([tb, ab, 1])
    def advance(so, st):
        if not bits:
            a(f"s_add_u32 s{so}, s{so}, {STEP}"); return
        a(f"s_add_u32 s{st}, s{st}, 1\ns_mov_b32 s{so}, s{sHB}")
        for tb, ab, n in runs:
            a(f"s_bfe_u32 s18, s{st}, {(n << 16) | tb:#x}\ns_lshl_b32 s18, s18, {ab}\ns_add_u32 s{so}, s{so}, s18")
    a(f"s_lshl_b32 s19, s3, 8")
    a(f"s_mov_b32 s{sK+2}, 0x10000000\ns_mov_b32 s{sK+3}, 0x20000\ns_mov_b32 s{sV+2}, 0x10000000\ns_mov_b32 s{sV+3}, 0x20000")
    a(f"s_mov_b32 s{sOM+2}, 2048\ns_mov_b32 s{sOM+3}, 0x20000\ns_mov_b32 s{sQ+2}, 32768\ns_mov_b32 s{sQ+3}, 0x20000")
    a(f"s_mul_i32 s{sLB}, s{sW}, {KWAVE}\ns_add_u32 s{sLB}, s{sLB}, {KBASE}")
    cm("LDS-DMA source offsets: row (lane>>4), chunk (lane&15) ^ (4*(lane>>4) + j)")
    a(f"v_lshlrev_b32 v{vX+3}, 2, v{vT2}\nv_lshlrev_b32 v{vBT}, 8, v{vT2}")
    for j in range(4):
        a(f"v_add_u32 v{vBT+1}, {j}, v{vX+3}\nv_xor_b32 v{vBT+1}, v{vBT+1}, v{vT1}\nv_lshl_add_u32 v{vL+j}, v{vBT+1}, 4, v{vBT}")
    cm("omega offset (rows 8..15 duplicate rows 0..7), q offset g*16")
    a(f"v_and_b32 v{vBT+2}, 7, v{vLANE}\nv_lshlrev_b32 v{vBT+2}, 8, v{vBT+2}\nv_add_u32 v{vBT+2}, v{vBT+2}, v{vX+2}")
    a("s_waitcnt lgkmcnt(0)")
    if stamps: a("s_mov_b32 s64, s62")
    stamp(1)
    a(f"s_mov_b32 s{sK}, s6\ns_mov_b32 s{sK+1}, s7\ns_mov_b32 s{sV}, s8\ns_mov_b32 s{sV+1}, s9")
    a(f"s_mov_b32 s{sOM}, s10\ns_mov_b32 s{sOM+1}, s11\ns_mov_b32 s{sQ}, s4\ns_mov_b32 s{sQ+1}, s5")
    for j in range(4): a(f"buffer_load_dwordx4 {r4(vOM+4*j)}, v{vBT+2}, {srd(sOM)}, 0 offen offset:{64*j}")
    for j in range(4): a(f"buffer_load_dwordx4 {r4(vBT+4+4*j)}, v{vX+2}, {srd(sQ)}, s19 offen offset:{64*j}")
    vQ = vBT + 4
    kk = ['M', 'L'] if kfirst == 'M' else ['L', 'M']
    if kinds: kk = list(kinds)
    vk = ['X', 'C'] if vfirst == 'X' else ['C', 'X']
    def kkind(t): return kk[t & 1]
    def vkind(u): return vk[u & 1]
    def slot(t): return (t >> 1) % NS
    def kslot(t): return (t >> 1) % NSK
    def loadK(t):
        if kkind(t) == 'M':
            for j in range(4): a(f"buffer_load_dwordx4 {r4(vM[kslot(t)]+4*j)}, v{vKO}, {srd(sK)}, s{sOK} offen offset:{64*j} {fl}")
        else:
            a(f"s_add_u32 m0, s{sLB}, {4096*kslot(t)}\ns_nop 0")
            for j in range(4): a(f"buffer_load_dwordx4 v{vL+j}, {srd(sK)}, s{sOK} offen offset:{1024*j} {fl} lds")
        advance(sOK, sTK)
    def vbuf(u): return (vM if vkind(u) == 'X' else vC)[slot(u)]
    def loadV(u):
        b = vbuf(u)
        if vkind(u) == 'X':
            for r in range(4):
                for q in range(4): a(f"buffer_load_dword v{b+4*r+q}, v{vXO}, {srd(sV)}, s{sOV} offen offset:{1024*r+64*q} {fl}")
        else:
            for r in range(4): a(f"buffer_load_dwordx4 {r4(b+4*r)}, v{vVO}, {srd(sV)}, s{sOV} offen offset:{1024*r} {fl}")
        advance(sOV, sTV)
    def nK(t): return 4
    def nV(u): return 16 if vkind(u) == 'X' else 4
    for t in range(DK):
        if startbig and kkind(t) == 'M':
            a(f"s_add_u32 m0, s{sLB}, {4096*(2+kslot(t))}\ns_nop 0")
            for j in range(4): a(f"buffer_load_dwordx4 v{vL+j}, {srd(sK)}, s{sOK} offen offset:{1024*j} {fl} lds")
            advance(sOK, sTK)
        else: loadK(t)
    cm("remaining lane addresses and constants (overlap the first loads)")
    a(f"v_and_b32 v{vT0}, 3, v{vT1}\nv_xor_b32 v{vT0}, v{vT0}, v{vT2}\nv_lshrrev_b32 v{vT3}, 2, v{vT1}")
    a(f"v_and_b32 v{vX}, 3, v{vT1}\nv_lshlrev_b32 v{vX}, 10, v{vX}\nv_lshl_add_u32 v{vX}, v{vT3}, 8, v{vX}\nv_add_u32 v{vX}, s{sLB}, v{vX}")
    for j in range(4):
        a(f"v_xor_b32 v{vX+1}, {j}, v{vT3}\nv_lshl_add_u32 v{vX+1}, v{vX+1}, 2, v{vT0}\nv_lshl_add_u32 v{vR+j}, v{vX+1}, 4, v{vX}")
    a(f"v_and_b32 v{vT0}, 7, v{vLANE}\nv_lshl_add_u32 v{vT0}, v{vT2}, 3, v{vT0}\nv_lshlrev_b32 v{vT0}, 3, v{vT0}\ns_mul_i32 s18, s{sW}, {PWAVE}\nv_add_u32 v{vPW}, s18, v{vT0}\nv_mov_b32 v{vPR}, v{vPW}")
    a(f"s_mov_b32 s{sWS}, s16\ns_mov_b32 s{sWS+1}, s17\ns_mov_b32 s{sWS+2}, {TBL + 16*2048}\ns_mov_b32 s{sWS+3}, 0x20000")
    a(f"s_mov_b32 s{sDB}, s14\ns_mov_b32 s{sDB+1}, s15\ns_mov_b32 s{sDB+2}, 256\ns_mov_b32 s{sDB+3}, 0x20000")
    a(f"s_lshl_b32 s{sOWN}, s2, 10\ns_add_u32 s{sOWN}, s{sOWN}, {WSP}\ns_xor_b32 s{sPAR}, s{sOWN}, 1024")
    a(f"s_mov_b32 s{sSELLO}, 0x05040100\ns_mov_b32 s{sSELHI}, 0x07060302\ns_mov_b32 s{sC1}, {f2u(C1):#x}\ns_mov_b32 s{sEPS}, {f2u(1e-6):#x}")
    cm("workgroup 0, wave 0 proposes this launch's tag (a clock value, never 0): debug[0] keeps the first proposal it gets")
    a(f"s_or_b32 s56, s2, s{sW}\ns_cmp_lg_u32 s56, 0\ns_cbranch_scc1 L_notag")
    a("s_memrealtime s[56:57]\ns_waitcnt lgkmcnt(0)\ns_or_b32 s56, s56, 1")
    a(f"v_mov_b32 v{vFLAG+2}, s56\nv_mov_b32 v{vFLAG+3}, 0\nv_mov_b32 v{vT0}, 0\ns_mov_b64 exec, 1")
    a(f"buffer_atomic_cmpswap v[{vFLAG+2}:{vFLAG+3}], v{vT0}, {srd(sDB)}, 0 offen\ns_mov_b64 exec, -1")
    a("L_notag:")
    for i in range(32): a(f"v_mov_b32 v{vACC_C+i}, 0")
    for i in range(4): a(f"v_mov_b32 v{vZ+i}, 0")
    for i in range(4): a(f"v_mov_b32 v{vCC+i}, {f2u(-1.5):#x}")
    a(f"v_mov_b32 v{vONE}, 0x3f803f80\nv_mov_b32 v{vONE+1}, 0x3f803f80\nv_mov_b32 v{vCB}, {f2u(C2):#x}")
    if stamps: a("s_mov_b32 s75, 0")
    a(f"s_mov_b32 s{sCRED}, 0\ns_mov_b32 s{sF[0]}, 0\ns_mov_b32 s{sF[1]}, 0\ns_mov_b32 s{sJ}, 0\ns_mov_b32 s{sTAG}, 0\ns_mov_b32 s{sTOT}, 0")
    a(f"s_mov_b32 s{sTM}, 0\ns_mov_b32 s{sTMP}, 0\ns_mov_b32 s{sC1p}, 0\ns_mov_b32 s{sC2p}, 0")
    if startbig: a(f"s_mov_b32 s{sF[0]}, 1\ns_mov_b32 s{sF[1]}, 1")
    if ths1 is not None: a(f"s_mov_b32 s100, {ths}\ns_mov_b32 s101, {ths1}\ns_bitcmp1_b32 s2, 0\ns_cselect_b32 s100, s101, s100")
    if cap is not None: a(f"s_mov_b32 s{sCAP}, {cap}")
    a(f"s_mov_b32 s{sROW}, {e0}")
    if forced is not None:
        a(f"s_cmp_lt_u32 s2, {forced}\ns_cselect_b32 s{sCRED}, 0x7fffffff, 0")
    a(f"v_mov_b32 v{vFLAG+1}, {CTL}")
    a(f"v_mov_b32 v{vT0}, 0\nds_write_b32 v{vFLAG+1}, v{vT0}")
    cm("phi(q): D[m][*] = omega . q, plus the squared norm through an f32 MFMA")
    a(f"s_waitcnt vmcnt({4*DK})")
    stamp(3)
    for j in range(4): a(f"v_mfma_f32_16x16x32_bf16 {r4(vS)}, {r4(vOM+4*j)}, {r4(vQ+4*j)}, {'0' if j==0 else r4(vS)}")
    def sq(src):
        for i in range(16):
            acc = vSQ0 + (i & 1)
            a(f"v_dot2_f32_bf16 v{acc}, v{src+i}, v{src+i}, {'0' if i < 2 else 'v%d' % acc}")
        a(f"s_nop 2\nv_add_f32 v{vSQ0}, v{vSQ0}, v{vSQ1}\ns_nop 1")
    sq(vQ)
    a(f"v_mfma_f32_16x16x4_f32 {r4(vT)}, v{vCB}, v{vSQ0}, {r4(vCC)}\ns_nop 10")
    def phi(dst):
        for r in range(4): a(f"v_fma_f32 v{dst+r}, v{vS+r}, s{sC1}, v{vT+r}")
        for r in range(4): a(f"v_exp_f32 v{dst+r}, v{dst+r}")
        for r in range(4): a(f"v_add_f32 v{dst+r}, s{sEPS}, v{dst+r}")
    phi(vPQ)
    a(f"v_cmp_gt_u32 vcc, 32, v{vLANE}\ns_nop 1")
    for r in range(4): a(f"v_cndmask_b32 v{vPQ+r}, 0, v{vPQ+r}, vcc")
    lab2 = [0]
    def newlab(p):
        lab2[0] += 1
        return f"L_{p}{lab2[0]}"
    def waitdyn(base, flags):
        if not flags:
            a(f"s_waitcnt vmcnt({base})"); return
        e = newlab("we")
        if len(flags) == 1:
            l = newlab("wa")
            a(f"s_cmp_eq_u32 s{flags[0]}, 0\ns_cbranch_scc1 {l}\ns_waitcnt vmcnt({base+4})\ns_branch {e}\n{l}:\ns_waitcnt vmcnt({base+8})\n{e}:")
        else:
            l1, l2 = newlab("wa"), newlab("wb")
            a(f"s_add_u32 s{sX0}, s{flags[0]}, s{flags[1]}\ns_cmp_eq_u32 s{sX0}, 0\ns_cbranch_scc1 {l1}\ns_cmp_eq_u32 s{sX0}, 1\ns_cbranch_scc1 {l2}")
            a(f"s_waitcnt vmcnt({base+8})\ns_branch {e}\n{l2}:\ns_waitcnt vmcnt({base+12})\ns_branch {e}\n{l1}:\ns_waitcnt vmcnt({base+16})\n{e}:")
    def choose(sl, small, large):
        l, e = newlab("big"), newlab("cj")
        a(f"s_cmp_lg_u32 s{sCRED}, 0\ns_cbranch_scc1 {l}")
        small(); a(f"s_mov_b32 s{sF[sl]}, 0\ns_branch {e}\n{l}:")
        large(); a(f"s_mov_b32 s{sF[sl]}, 1\ns_sub_u32 s{sCRED}, s{sCRED}, 1")
        if stamps: a("s_add_u32 s75, s75, 1")
        a(f"{e}:")
    def loadK_flex(sl):
        def small():
            for j in range(4): a(f"buffer_load_dwordx4 {r4(vM[sl]+4*j)}, v{vKO}, {srd(sK)}, s{sOK} offen offset:{64*j} {fl}")
        def large():
            a(f"s_add_u32 m0, s{sLB}, {4096*(2+sl)}\ns_nop 0")
            for j in range(4): a(f"buffer_load_dwordx4 v{vL+j}, {srd(sK)}, s{sOK} offen offset:{1024*j} {fl} lds")
        choose(sl, small, large)
        advance(sOK, sTK)
    def loadV_flex(sl):
        b = vM[sl]
        def small():
            for r in range(4):
                for hf in range(2): a(f"buffer_load_dwordx2 {r2(b+4*r+2*hf)}, v{vVO}, {srd(sV)}, s{sOV} offen offset:{1024*r+8*hf} {fl}")
        def large():
            for r in range(4): a(f"buffer_load_dwordx4 {r4(b+4*r)}, v{vVO}, {srd(sV)}, s{sOV} offen offset:{1024*r} {fl}")
        choose(sl, small, large)
        advance(sOV, sTV)
    def ktile(t, wait, refill):
        wait()
        if kkind(t) == 'M':
            sl = kslot(t); kb = vM[sl]
            l = newlab("km")
            a(f"s_cmp_eq_u32 s{sF[sl]}, 0\ns_cbranch_scc1 {l}")
            for j in range(4): a(f"ds_read_b128 {r4(kb+4*j)}, v{vR+j} offset:{4096*(2+sl)}")
            a(f"s_waitcnt lgkmcnt(0)\n{l}:")
        else:
            kb = vLT
            for j in range(4): a(f"ds_read_b128 {r4(vLT+4*j)}, v{vR+j} offset:{4096*kslot(t)}")
            a("s_waitcnt lgkmcnt(0)")
            refill(); refill = None
        for j in range(4): a(f"v_mfma_f32_16x16x32_bf16 {r4(vS)}, {r4(kb+4*j)}, {r4(vOM+4*j)}, {'0' if j==0 else r4(vS)}")
        if refill:
            for i in range(16):
                acc = vSQ0 + (i & 1)
                a(f"v_dot2_f32_bf16 v{acc}, v{kb+i}, v{kb+i}, {'0' if i < 2 else 'v%d' % acc}")
            refill()
            a(f"v_add_f32 v{vSQ0}, v{vSQ0}, v{vSQ1}\ns_nop 1")
            a(f"v_mfma_f32_16x16x4_f32 {r4(vT)}, v{vSQ0}, v{vCB}, {r4(vCC)}\ns_nop 9")
        else:
            sq(kb)
            a(f"v_mfma_f32_16x16x4_f32 {r4(vT)}, v{vSQ0}, v{vCB}, {r4(vCC)}\ns_nop 9")
        phi(vX)
        a(f"v_cvt_pk_bf16_f32 v{vP[0]}, v{vX}, v{vX+1}\nv_cvt_pk_bf16_f32 v{vP[0]+1}, v{vX+2}, v{vX+3}")
        a(f"ds_write_b64 v{vPW}, {r2(vP[0])}\nv_add_u32 v{vPW}, 256, v{vPW}")
        a(f"v_mfma_f32_16x16x16_bf16 {r4(vZ)}, {r2(vP[0])}, {r2(vONE)}, {r4(vZ)}")
    def control_once(where):
        if where == 'k':
            e, l1 = newlab("o"), newlab("o")
            a(f"s_cmp_lg_u32 s{sW}, 0\ns_cbranch_scc1 {e}")
            a(f"s_cmp_lg_u32 s{sJ}, 1\ns_cbranch_scc1 {l1}\nv_mov_b32 v{vT0}, 0\nbuffer_load_dword v{vFLAG}, v{vT0}, {srd(sDB)}, 0 offen\n{l1}:")
            a(f"s_cmp_lg_u32 s{sJ}, 3\ns_cbranch_scc1 {e}\nv_readfirstlane_b32 s{sTAG}, v{vFLAG}\n{e}:")
        elif where == 't':
            e = newlab("o")
            a(f"s_cmp_lg_u32 s{sW}, 0\ns_cbranch_scc1 {e}\ns_cmp_eq_u32 s{sTAG}, 0\ns_cbranch_scc1 {e}")
            a(f"s_memrealtime s[60:61]\ns_waitcnt lgkmcnt(0)\ns_sub_u32 s60, s60, s{sTAG}\ns_mov_b32 s{sTM}, s60\ns_xor_b32 s61, s60, s{sTAG}")
            a(f"v_mov_b32 v{vROW}, s60\nv_mov_b32 v{vROW+1}, s61\ns_lshl_b32 s{sX0}, s2, 3\nv_mov_b32 v{vT0}, s{sX0}\ns_mov_b32 s{sROW}, {TBL}")
            if not nostore: a(f"s_mov_b64 exec, 1\nbuffer_store_dwordx2 {r2(vROW)}, v{vT0}, {srd(sWS)}, s{sROW} offen {stfl}\ns_mov_b64 exec, -1")
            a(f"{e}:")
        else:
            e, l1, l2, l3 = newlab("o"), newlab("o"), newlab("o"), newlab("o")
            a(f"s_min_u32 s{sCRED}, s{sTOT}, 2\ns_sub_u32 s{sTOT}, s{sTOT}, s{sCRED}")
            a(f"s_cmp_lg_u32 s{sJ}, {jl+2}\ns_cbranch_scc1 {l3}")
            a(f"ds_read_b32 v{vT0}, v{vFLAG+1}\ns_waitcnt lgkmcnt(0)\nv_readfirstlane_b32 s{sTOT}, v{vT0}\ns_nop 3\n{l3}:")
            a(f"s_cmp_lg_u32 s{sW}, 0\ns_cbranch_scc1 {e}\ns_cmp_eq_u32 s{sTM}, 0\ns_cbranch_scc1 {e}")
            a(f"s_cmp_lg_u32 s{sJ}, {jl}\ns_cbranch_scc1 {l1}")
            a(f"s_mov_b32 s{sROW}, {TBL}\nv_lshlrev_b32 v{vT0}, 5, v{vLANE}\ns_nop 0")
            if not noload: a(f"buffer_load_dwordx4 {r4(vROW)}, v{vT0}, {srd(sWS)}, s{sROW} offen\nbuffer_load_dwordx4 {r4(vROW+4)}, v{vT0}, {srd(sWS)}, s{sROW} offen offset:16")
            a(f"s_branch {e}\n{l1}:\ns_cmp_lg_u32 s{sJ}, {jl+1}\ns_cbranch_scc1 {e}")
            a(f"v_mov_b32 v{vT0}, 0\nv_mov_b32 v{vT1}, 0")
            for i in range(4):
                a(f"v_xor_b32 v{vT2}, v{vROW+2*i}, v{vROW+2*i+1}\nv_cmp_eq_u32 vcc, s{sTAG}, v{vT2}\ns_nop 1\nv_cndmask_b32 v{vT2}, 0, v{vROW+2*i}, vcc\nv_add_u32 v{vT0}, v{vT0}, v{vT2}\nv_addc_co_u32 v{vT1}, vcc, 0, v{vT1}, vcc")
            a(f"v_mov_b32 v{vT2}, 0\nv_mov_b32 v{vT3}, 0\nds_write_b64 v{vFLAG+1}, v[{vT2}:{vT3}] offset:8")
            a(f"ds_add_u32 v{vFLAG+1}, v{vT0} offset:8\nds_add_u32 v{vFLAG+1}, v{vT1} offset:12\nds_read_b64 v[{vT2}:{vT3}], v{vFLAG+1} offset:8\ns_waitcnt lgkmcnt(0)")
            a(f"v_cvt_f32_u32 v{vT0}, v{vT2}\nv_cvt_f32_u32 v{vT1}, v{vT3}\nv_rcp_f32 v{vT1}, v{vT1}\ns_nop 0\nv_mul_f32 v{vT0}, v{vT0}, v{vT1}\nv_cvt_u32_f32 v{vT0}, v{vT0}\ns_nop 0")
            a(f"v_readfirstlane_b32 s{sX0}, v{vT0}\nv_readfirstlane_b32 s{sX1}, v{vT3}\ns_nop 3")
            a(f"s_sub_u32 s{sX0}, s{sTM}, s{sX0}\ns_sub_u32 s{sX0}, s{sX0}, {theta}")
            a(f"s_mul_i32 s60, s{sX0}, {qmul}\ns_ashr_i32 s60, s60, 10\ns_add_u32 s60, s60, 1\ns_cmp_gt_i32 s{sX0}, 0\ns_cselect_b32 s60, s60, 0\ns_min_u32 s60, s60, {tmax}")
            a(f"s_cmp_ge_u32 s{sX1}, {mincnt}\ns_cselect_b32 s60, s60, 0\nv_mov_b32 v{vT0}, s60\nds_write_b32 v{vFLAG+1}, v{vT0}")
            a(f"{e}:")
    def control(where='k'):
        if ctl == 'once':
            return control_once(where)
        if ctl == 'self':
            e1, e2 = newlab("st"), newlab("st")
            cm("group of four tiles: the clock is asked for here and read after the second tile")
            a("s_memrealtime s[60:61]")
            for ci, c in enumerate(recen):
                if (where == 'v') == (c + 2 >= 16):
                    l_ = newlab("rl")
                    a(f"s_cmp_lg_u32 s{sJ}, {c+2}\ns_cbranch_scc1 {l_}\nv_and_b32 v{vT0}, 7, v{vLANE}\nv_lshlrev_b32 v{vT0}, 3, v{vT0}")
                    a(f"s_mov_b32 s{sX1}, {TBL + 128*ci}\nbuffer_load_dwordx2 {r2(vROW)}, v{vT0}, {srd(sWS)}, s{sX1} offen\n{l_}:")
            if where == 'k':
                a(f"s_cmp_lg_u32 s{sJ}, 1\ns_cbranch_scc1 {e1}\nv_mov_b32 v{vT0}, 0\nbuffer_load_dword v{vFLAG}, v{vT0}, {srd(sDB)}, 0 offen\n{e1}:")
                a(f"s_cmp_lg_u32 s{sJ}, 2\ns_cbranch_scc1 {e2}\nv_readfirstlane_b32 s{sTAG}, v{vFLAG}\n{e2}:")
            return
        if ctl == 'static':
            e = newlab("cs")
            a(f"s_bitcmp1_b32 s{sJ}, 0\ns_cbranch_scc1 {e}\ns_cmp_lt_u32 s{sJ}, 15\ns_cselect_b32 s{sCRED}, {kd}, {vd}\n{e}:")
            return
        if ctl != 'on': return
        odd, end = newlab("co"), newlab("ce")
        a(f"s_bitcmp1_b32 s{sJ}, 0\ns_cbranch_scc1 {odd}")
        a(f"ds_read_b32 v{vT0}, v{vFLAG+1}\ns_waitcnt lgkmcnt(0)\nv_readfirstlane_b32 s{sX0}, v{vT0}\ns_nop 3")
        a(f"s_lshr_b32 s{sX1}, s{sX0}, 8\ns_and_b32 s{sX0}, s{sX0}, 0xff\ns_cmp_eq_u32 s{sX1}, s{sJ}\ns_cselect_b32 s{sCRED}, s{sX0}, 0")
        a(f"s_cmp_lg_u32 s{sW}, 0\ns_cbranch_scc1 {end}")
        nt = newlab("ct")
        a(f"s_cmp_lg_u32 s{sTAG}, 0\ns_cbranch_scc1 {nt}")
        a(f"s_cmp_eq_u32 s{sJ}, 0\ns_cbranch_scc1 {end}")
        a(f"v_readfirstlane_b32 s{sTAG}, v{vFLAG}\ns_nop 3\ns_cmp_eq_u32 s{sTAG}, 0\ns_cbranch_scc1 {end}")
        a(f"{nt}:")
        a(f"s_memrealtime s[60:61]\ns_waitcnt lgkmcnt(0)\ns_sub_u32 s60, s60, s{sTAG}\ns_mov_b32 s{sTMP}, s{sTM}\ns_mov_b32 s{sTM}, s60")
        a(f"s_lshr_b32 s{sROW}, s{sJ}, 1\ns_lshl_b32 s{sROW}, s{sROW}, 11\ns_add_u32 s{sROW}, s{sROW}, {TBL}")
        a(f"s_xor_b32 s61, s60, s{sTAG}\nv_mov_b32 v{vROW}, s60\nv_mov_b32 v{vROW+1}, s61\ns_lshl_b32 s{sX0}, s2, 3\nv_mov_b32 v{vT0}, s{sX0}")
        if not nostore: a(f"s_mov_b64 exec, 1\nbuffer_store_dwordx2 {r2(vROW)}, v{vT0}, {srd(sWS)}, s{sROW} offen {stfl}\ns_mov_b64 exec, -1")
        a(f"s_sub_u32 s{sROW}, s{sROW}, 2048\nv_lshlrev_b32 v{vT0}, 5, v{vLANE}\ns_nop 0")
        if not noload: a(f"buffer_load_dwordx4 {r4(vROW)}, v{vT0}, {srd(sWS)}, s{sROW} offen\nbuffer_load_dwordx4 {r4(vROW+4)}, v{vT0}, {srd(sWS)}, s{sROW} offen offset:16")
        a(f"s_branch {end}")
        a(f"{odd}:\ns_cmp_lg_u32 s{sW}, 0\ns_cbranch_scc1 {end}")
        tagask = newlab("cq")
        a(f"s_cmp_eq_u32 s{sTAG}, 0\ns_cbranch_scc1 {tagask}")
        a(f"s_cmp_eq_u32 s{sTMP}, 0\ns_cbranch_scc1 {end}")
        cm("valid entries carry time ^ tag in their second word")
        a(f"v_mov_b32 v{vT0}, 0\nv_mov_b32 v{vT1}, 0")
        for i in range(4):
            a(f"v_xor_b32 v{vT2}, v{vROW+2*i}, v{vROW+2*i+1}\nv_cmp_eq_u32 vcc, s{sTAG}, v{vT2}\ns_nop 1\nv_cndmask_b32 v{vT2}, 0, v{vROW+2*i}, vcc\nv_add_u32 v{vT0}, v{vT0}, v{vT2}\nv_addc_co_u32 v{vT1}, vcc, 0, v{vT1}, vcc")
        a(f"v_mov_b32 v{vT2}, 0\nv_mov_b32 v{vT3}, 0\nds_write_b64 v{vFLAG+1}, v[{vT2}:{vT3}] offset:8")
        a(f"ds_add_u32 v{vFLAG+1}, v{vT0} offset:8\nds_add_u32 v{vFLAG+1}, v{vT1} offset:12\nds_read_b64 v[{vT2}:{vT3}], v{vFLAG+1} offset:8\ns_waitcnt lgkmcnt(0)")
        a(f"v_cvt_f32_u32 v{vT0}, v{vT2}\nv_cvt_f32_u32 v{vT1}, v{vT3}\nv_rcp_f32 v{vT1}, v{vT1}\ns_nop 0\nv_mul_f32 v{vT0}, v{vT0}, v{vT1}\nv_cvt_u32_f32 v{vT0}, v{vT0}\ns_nop 0")
        a(f"v_readfirstlane_b32 s{sX0}, v{vT0}\nv_readfirstlane_b32 s{sX1}, v{vT3}\ns_nop 3")
        cm("lag = own time - mean - credits still in the pipe - dead band")
        a(f"s_sub_u32 s{sX0}, s{sTMP}, s{sX0}\ns_add_u32 s60, s{sC1p}, s{sC2p}\ns_mul_i32 s60, s60, 25\ns_sub_u32 s{sX0}, s{sX0}, s60\ns_sub_u32 s{sX0}, s{sX0}, {theta}")
        a(f"s_mul_i32 s60, s{sX0}, {qmul}\ns_ashr_i32 s60, s60, 10\ns_add_u32 s60, s60, 1\ns_cmp_gt_i32 s{sX0}, 0\ns_cselect_b32 s60, s60, 0\ns_min_u32 s60, s60, {cmax}")
        a(f"s_cmp_ge_u32 s{sX1}, {mincnt}\ns_cselect_b32 s60, s60, 0")
        a(f"s_mov_b32 s{sC2p}, s{sC1p}\ns_mov_b32 s{sC1p}, s60")
        a(f"s_add_u32 s61, s{sJ}, 1\ns_lshl_b32 s61, s61, 8\ns_or_b32 s60, s60, s61\nv_mov_b32 v{vT0}, s60\nds_write_b32 v{vFLAG+1}, v{vT0}")
        a(f"s_branch {end}")
        a(f"{tagask}:\nv_mov_b32 v{vT0}, 0\nbuffer_load_dword v{vFLAG}, v{vT0}, {srd(sDB)}, 0 offen")
        a(f"{end}:\n")
    def pace(step, where='k'):
        if ctl != 'self': return
        e = newlab("sp")
        cm("a wave that lags gets credits: its next flexible tiles use large requests")
        a(f"s_mov_b32 s{sCRED}, 0\ns_cmp_eq_u32 s{sTAG}, 0\ns_cbranch_scc1 {e}")
        a(f"s_sub_u32 s60, s60, s{sTAG}\ns_sub_u32 s60, s60, s{sROW}")
        for ci, c in enumerate(recen):
            if (where == 'v') == (c >= 16):
                cm("eight sample waves post where they stand")
                l_ = newlab("rp")
                a(f"s_cmp_lg_u32 s{sJ}, {c}\ns_cbranch_scc1 {l_}\ns_cmp_lg_u32 s{sW}, 0\ns_cbranch_scc1 {l_}\ns_mul_i32 s61, s2, 1986\ns_lshr_b32 s61, s61, 16")
                a(f"s_mul_i32 s{sX0}, s61, 33\ns_cmp_lg_u32 s{sX0}, s2\ns_cbranch_scc1 {l_}")
                a(f"s_add_u32 s{sX0}, s60, {BIAS}\ns_xor_b32 s{sX1}, s{sX0}, s{sTAG}\nv_mov_b32 v{vROW}, s{sX0}\nv_mov_b32 v{vROW+1}, s{sX1}\ns_lshl_b32 s61, s61, 3\nv_mov_b32 v{vT0}, s61")
                a(f"s_mov_b32 s{sX1}, {TBL + 128*ci}\ns_mov_b64 exec, 1\nbuffer_store_dwordx2 {r2(vROW)}, v{vT0}, {srd(sWS)}, s{sX1} offen sc1\ns_mov_b64 exec, -1\n{l_}:")
            if (where == 'v') == (c + 3 >= 16):
                cm("every wave centres its clock line on the mean of the samples (skipped unless all eight carry this launch's tag)")
                l_ = newlab("rc")
                a(f"s_cmp_lg_u32 s{sJ}, {c+3}\ns_cbranch_scc1 {l_}\ns_mov_b32 s{sX0}, 0\ns_mov_b32 s{sX1}, 0")
                for i in range(8):
                    a(f"v_readlane_b32 s61, v{vROW}, {i}\nv_readlane_b32 s94, v{vROW+1}, {i}\ns_nop 0\ns_xor_b32 s94, s94, s61\ns_cmp_eq_u32 s94, s{sTAG}\ns_cselect_b32 s61, s61, 0\ns_cselect_b32 s94, 1, 0\ns_add_u32 s{sX0}, s{sX0}, s61\ns_add_u32 s{sX1}, s{sX1}, s94")
                a(f"s_cmp_lt_u32 s{sX1}, 8\ns_cbranch_scc1 {l_}\ns_lshr_b32 s{sX0}, s{sX0}, 3\ns_sub_u32 s{sX0}, s{sX0}, {BIAS}\ns_add_u32 s{sROW}, s{sROW}, s{sX0}\ns_sub_u32 s60, s60, s{sX0}\n{l_}:")
        if stamps or dbglate:
            for jj, st in ((4, 68), (12, 67), (20, 71), (28, 72)):
                l_ = newlab("dg"); a(f"s_cmp_lg_u32 s{sJ}, {jj}\ns_cbranch_scc1 {l_}\ns_mov_b32 s{st+20}, s60\n{l_}:")
        a(f"s_cmp_gt_i32 s60, {theta}\ns_cselect_b32 s{sCRED}, 2, 0")
        if th2 is not None: a(f"s_cmp_gt_i32 s60, {th2}\ns_cselect_b32 s61, 1, 0\ns_max_u32 s{sCRED}, s{sCRED}, s61")
        if cap is not None: a(f"s_min_u32 s{sCRED}, s{sCRED}, s{sCAP}\ns_sub_u32 s{sCAP}, s{sCAP}, s{sCRED}")
        if ths is not None and where == 'v':
            l2 = newlab("ss")
            a(f"s_cmp_lt_u32 s{sJ}, {js}\ns_cbranch_scc1 {l2}\ns_cmp_gt_i32 s60, {('s100' if ths1 is not None else ths)}\ns_cselect_b32 s{sCRED}, 2, s{sCRED}\n{l2}:")
            a(f"{e}:\ns_add_u32 s{sROW}, s{sROW}, {step}")
        else:
            a(f"{e}:\ns_cmp_ge_u32 s{sJ}, {js}\ns_cselect_b32 s{sCRED}, 2, s{sCRED}\ns_add_u32 s{sROW}, s{sROW}, {step}")
    def nextJ():
        if ctl in ('on', 'static', 'once', 'self'): a(f"s_add_u32 s{sJ}, s{sJ}, 1")
    cm("K phase: tiles alternate between direct MFMA-layout loads and LDS staged rows")
    NIT = (NT - DK) // DK
    a(f"s_mov_b32 s{sCNT}, {NIT}\nL_kloop:")
    control()
    for t in range(DK):
        ktile(t, lambda: waitdyn(12, []), (lambda t=t: loadK_flex(kslot(t))) if kkind(t) == 'M' else (lambda t=t: loadK(t)))
        if t == 1: pace(bk)
    nextJ()
    a(f"s_sub_u32 s{sCNT}, s{sCNT}, 1\ns_cmp_lg_u32 s{sCNT}, 0\ns_cbranch_scc1 L_kloop")
    cm("last four K tiles: their refills start the V stream")
    control('t')
    ktile(60, lambda: waitdyn(12, []), lambda: loadV_flex(0))
    ktile(61, lambda: waitdyn(8, [sF[0]]), lambda: loadV(1))
    pace(bk)
    ktile(62, lambda: waitdyn(8, [sF[0]]), lambda: loadV_flex(1))
    ktile(63, lambda: waitdyn(4, [sF[0], sF[1]]), lambda: loadV(3))
    nextJ()
    stamp(2)
    lab = [0]
    def w0only(body):
        lab[0] += 1
        a(f"s_cmp_lg_u32 s{sW}, 0\ns_cbranch_scc1 L_w0_{lab[0]}")
        body()
        a(f"L_w0_{lab[0]}:")
    def readP(u): a(f"ds_read_b64 {r2(vP[u & 1])}, v{vPR}\nv_add_u32 v{vPR}, 256, v{vPR}")
    def vtile(u, wait, refill, hook=None, last=False):
        flex = vkind(u) == 'X'; sl = slot(u)
        b = vbuf(u); P = vP[u & 1]
        if wait: wait()
        if hook: hook()
        def perms(q):
            a(f"v_perm_b32 v{vBT+4*q+0}, v{b+4+q}, v{b+q}, s{sSELLO}")
            a(f"v_perm_b32 v{vBT+4*q+1}, v{b+12+q}, v{b+8+q}, s{sSELLO}")
            a(f"v_perm_b32 v{vBT+4*q+2}, v{b+4+q}, v{b+q}, s{sSELHI}")
            a(f"v_perm_b32 v{vBT+4*q+3}, v{b+12+q}, v{b+8+q}, s{sSELHI}")
        def pv(acc, e): a(f"v_mfma_f32_16x16x16_bf16 {r4(acc+4*e)}, {r2(P)}, {r2(vBT+2*e)}, {r4(acc+4*e)}")
        if refill and flex:
            for q in range(4): perms(q)
            loadV_flex(sl)
            a("s_waitcnt lgkmcnt(0)")
            for e in range(8): pv(vACC_C, e)
            readP(u + 1)
        elif refill:
            for q in range(4): perms(q)
            loadV(u)
            a("s_waitcnt lgkmcnt(0)")
            for e in range(8): pv(vACC_C, e)
            readP(u + 1)
        else:
            a("s_waitcnt lgkmcnt(0)")
            acc = vACC_C
            perms(0); perms(1); pv(acc,0); pv(acc,1); perms(2); pv(acc,2); pv(acc,3); perms(3); pv(acc,4); pv(acc,5); pv(acc,6); pv(acc,7)
            if not last: readP(u + 1)
    def wv(u): return sum(nV(x) for x in range(u + 1, min(u + D, NT)))
    cm("V phase")
    readP(0)
    a(f"s_mov_b32 s{sCNT}, {(NT - D) // D}\nL_vloop:")
    control('v')
    vw = [lambda: waitdyn(8, [sF[1]]), lambda: waitdyn(4, [sF[0], sF[1]]), lambda: waitdyn(8, [sF[0]]), lambda: waitdyn(4, [sF[0], sF[1]])]
    for u in range(D):
        vtile(u, vw[u], True)
        if u == 1: pace(bv, 'v')
    nextJ()
    a(f"s_sub_u32 s{sCNT}, s{sCNT}, 1\ns_cmp_lg_u32 s{sCNT}, 0\ns_cbranch_scc1 L_vloop")
    def h_tag(): w0only(lambda: a(f"v_mov_b32 v{vT0}, 0\nbuffer_load_dword v{vFLAG}, v{vT0}, {srd(sDB)}, 0 offen"))
    def h_look(): w0only(lambda: a(f"buffer_load_dwordx4 {r4(vLOOK)}, v{vVO}, {srd(sWS)}, s{sPAR} offen sc1"))
    RB = KBASE
    def reduce_set(acc, kind):
        for e in range(8):
            bb = acc + 4*e
            a(f"v_mul_f32 v{vLT+e}, v{vPQ}, v{bb}")
            for r in range(1, 4): a(f"v_fmac_f32 v{vLT+e}, v{vPQ+r}, v{bb+r}")
        a("s_mov_b32 exec_hi, 0")
        if kind == 'C':
            a(f"ds_write_b128 v{vT2}, {r4(vLT)}\nds_write_b128 v{vT2}, {r4(vLT+4)} offset:16")
        else:
            for q in range(4): a(f"ds_write_b64 v{vT3}, {r2(vLT+2*q)} offset:{1024+128*q}")
        a("s_mov_b32 exec_hi, -1")
    a(f"v_lshlrev_b32 v{vT2}, 5, v{vLANE}\nv_add_u32 v{vT2}, s{sLB}, v{vT2}")
    a(f"v_lshrrev_b32 v{vT3}, 4, v{vLANE}\nv_lshlrev_b32 v{vT3}, 9, v{vT3}\nv_and_b32 v{vT1}, 15, v{vLANE}\nv_lshl_add_u32 v{vT3}, v{vT1}, 3, v{vT3}\nv_add_u32 v{vT3}, s{sLB}, v{vT3}")
    lastkind = vkind(NT-1); otherkind = vkind(NT-2)
    accof = {'C': vACC_C, 'X': vACC_X}
    vtile(60, lambda: waitdyn(8, [sF[1]]), False, h_tag)
    vtile(61, lambda: waitdyn(4, [sF[1]]), False)
    vtile(62, lambda: waitdyn(4, []), False)
    cm("the denominator goes to LDS while the last tile is in flight")
    a(f"v_mul_f32 v{vX}, v{vPQ}, v{vZ}")
    for r in range(1, 4): a(f"v_fmac_f32 v{vX}, v{vPQ+r}, v{vZ+r}")
    a(f"v_lshlrev_b32 v{vT1}, 2, v{vLANE}\nv_add_u32 v{vT1}, s{sLB}, v{vT1}\ns_mov_b32 exec_hi, 0\nds_write_b32 v{vT1}, v{vX} offset:2048\ns_mov_b32 exec_hi, -1")
    cm("wave 0 takes an early look at the partner's slot; the look is younger than the last V tile")
    a(f"s_cmp_lg_u32 s{sW}, 0\ns_cbranch_scc1 L_nolook")
    a(f"buffer_load_dwordx4 {r4(vLOOK)}, v{vVO}, {srd(sWS)}, s{sPAR} offen sc1\ns_waitcnt vmcnt(1)\ns_branch L_looked")
    a("L_nolook:\ns_waitcnt vmcnt(0)\nL_looked:")
    vtile(NT-1, None, False, None, last=True)
    stamp(5)
    a("s_nop 0")
    reduce_set(accof[lastkind], lastkind)
    a("s_waitcnt lgkmcnt(0)\ns_barrier")
    stamp(6)
    if stamps: a("s_mov_b32 s71, s70\ns_mov_b32 s72, s70\ns_mov_b32 s73, s70")
    if dbglate:
        l_ = newlab("dl")
        a(f"s_cmp_lg_u32 s{sW}, 1\ns_cbranch_scc1 {l_}\ns_lshr_b32 s60, s2, 6\ns_and_b32 s61, s2, 63\ns_cmp_lg_u32 s61, 21\ns_cbranch_scc1 {l_}")
        a(f"s_lshl_b32 s60, s60, 4\ns_add_u32 s60, s60, 4\nv_mov_b32 v4, s60\nv_mov_b32 v8, s88\nv_mov_b32 v9, s87\nv_mov_b32 v10, s91\nv_mov_b32 v11, s92")
        a(f"s_mov_b64 exec, 1\nbuffer_store_dwordx4 v[8:11], v4, {srd(sDB)}, 0 offen\ns_mov_b64 exec, -1\n{l_}:")
    a(f"s_cmp_lg_u32 s{sW}, 0\ns_cbranch_scc1 L_fin")
    cm("wave 0: sum the 8 numerator rows and 8 denominators; lane l owns d = 2l, 2l+1")
    a(f"v_lshlrev_b32 v{vT0}, 3, v{vLANE}\nv_add_u32 v{vT0}, {KBASE}, v{vT0}\nv_mov_b32 v{vT1}, {KBASE}")
    rows = [w * KWAVE + s_ * 1024 + g * 512 for w in range(waves) for s_ in range(1) for g in range(2)]
    for i, off in enumerate(rows): a(f"ds_read_b64 {r2(vACC_C+2*i)}, v{vT0} offset:{off}")
    zs = [w * KWAVE + 2048 + g * 64 for w in range(waves) for g in range(2)]
    for i, off in enumerate(zs): a(f"ds_read_b32 v{vM[0]+i}, v{vT1} offset:{off}")
    a(f"s_mov_b32 s{sV}, s12\ns_mov_b32 s{sV+1}, s13\ns_mov_b32 s{sV+2}, 32768\ns_mov_b32 s{sV+3}, 0x20000")
    a("s_waitcnt lgkmcnt(0)")
    n = len(rows)
    step = 1
    while step < n:
        for i in range(0, n, 2*step):
            a(f"v_add_f32 v{vACC_C+2*i}, v{vACC_C+2*i}, v{vACC_C+2*(i+step)}\nv_add_f32 v{vACC_C+2*i+1}, v{vACC_C+2*i+1}, v{vACC_C+2*(i+step)+1}")
        step *= 2
    step = 1
    while step < len(zs):
        for i in range(0, len(zs), 2*step): a(f"v_add_f32 v{vM[0]+i}, v{vM[0]+i}, v{vM[0]+i+step}")
        step *= 2
    a(f"v_mov_b32 v{vS}, v{vACC_C}\nv_mov_b32 v{vS+1}, v{vACC_C+1}\nv_mov_b32 v{vS+2}, v{vM[0]}")
    def check():
        a(f"v_xor_b32 v{vT0}, v{vLOOK}, v{vLOOK+1}\nv_xor_b32 v{vT1}, v{vLOOK+2}, v{vLOOK+3}\nv_xor_b32 v{vT0}, v{vT0}, v{vT1}")
        a(f"v_cmp_eq_u32 vcc, s{sTAG}, v{vT0}\ns_nop 1\ns_cmp_eq_u64 vcc, exec")
    cm("hand-off with the workgroup that holds the other half of this head (granules carry the launch tag)")
    a("s_waitcnt vmcnt(0)")
    a(f"v_readfirstlane_b32 s{sTAG}, v{vFLAG}\ns_nop 3\ns_cmp_lg_u32 s{sTAG}, 0\ns_cbranch_scc1 L_havetag")
    cm("no tag seen (yet): propose one; the compare-and-swap returns the tag that counts")
    a("s_memrealtime s[56:57]\ns_waitcnt lgkmcnt(0)\ns_or_b32 s56, s56, 1")
    a(f"v_mov_b32 v{vFLAG+2}, s56\nv_mov_b32 v{vFLAG+3}, 0\nv_mov_b32 v{vT0}, 0\ns_mov_b64 exec, 1")
    a(f"buffer_atomic_cmpswap v[{vFLAG+2}:{vFLAG+3}], v{vT0}, {srd(sDB)}, 0 offen sc0\ns_waitcnt vmcnt(0)\ns_mov_b64 exec, -1")
    a(f"v_readfirstlane_b32 s{sTAG}, v{vFLAG+2}\ns_nop 3\ns_cmp_eq_u32 s{sTAG}, 0\ns_cselect_b32 s{sTAG}, s56, s{sTAG}")
    a("L_havetag:")
    check()
    a("s_cbranch_scc1 L_final")
    a(f"v_xor_b32 v{vT0}, v{vS}, v{vS+1}\nv_xor_b32 v{vT0}, v{vT0}, v{vS+2}\nv_xor_b32 v{vS+3}, s{sTAG}, v{vT0}")
    a(f"buffer_store_dwordx4 {r4(vS)}, v{vVO}, {srd(sWS)}, s{sOWN} offen sc1")
    if look2:
        cm("second look travels together with the publication")
        a(f"buffer_load_dwordx4 {r4(vLOOK)}, v{vVO}, {srd(sWS)}, s{sPAR} offen sc1")
    a("s_waitcnt vmcnt(0)")
    stamp(7)
    if look2:
        check()
        a("s_cbranch_scc1 L_final")
    cm("own slot is visible now: if this look misses the partner, the partner's look finds this slot")
    a(f"buffer_load_dwordx4 {r4(vLOOK)}, v{vVO}, {srd(sWS)}, s{sPAR} offen sc1\ns_waitcnt vmcnt(0)")
    stamp(8)
    check()
    a("s_cbranch_scc0 L_fin")
    a("L_final:")
    a(f"v_add_f32 v{vS}, v{vS}, v{vLOOK}\nv_add_f32 v{vS+1}, v{vS+1}, v{vLOOK+1}\nv_add_f32 v{vS+2}, v{vS+2}, v{vLOOK+2}")
    a(f"v_add_f32 v{vS+2}, s{sEPS}, v{vS+2}\nv_rcp_f32 v{vS+2}, v{vS+2}\ns_nop 0")
    a(f"v_mul_f32 v{vS}, v{vS}, v{vS+2}\nv_mul_f32 v{vS+1}, v{vS+1}, v{vS+2}\nv_cvt_pk_bf16_f32 v{vS}, v{vS}, v{vS+1}")
    a(f"v_lshlrev_b32 v{vT0}, 2, v{vLANE}")
    a(f"buffer_store_dword v{vS}, v{vT0}, {srd(sV)}, s19 offen")
    a("L_fin:")
    if stamps:
        a(f"s_mov_b32 s{sK}, s16\ns_mov_b32 s{sK+1}, s17\ns_mov_b32 s{sK+2}, {1<<20}\ns_mov_b32 s{sK+3}, 0x20000")
        a("s_waitcnt vmcnt(0)")
        stamp(9)
        if ctl == 'self': a("s_mov_b32 s67, s88\ns_mov_b32 s68, s87\ns_mov_b32 s71, s91\ns_mov_b32 s72, s92")
        a(f"s_mul_i32 s58, s2, {waves}\ns_add_u32 s58, s58, s{sW}\ns_lshl_b32 s58, s58, 6")
        for i in range(12): a(f"v_mov_b32 v{8+i}, s{64+i}")
        a(f"v_mov_b32 v20, s58\ns_mov_b64 exec, 1")
        for i in range(3): a(f"buffer_store_dwordx4 v[{8+4*i}:{11+4*i}], v20, {srd(sK)}, 0 offen offset:{16*i}")
    a("L_done:\ns_endpgm")
    a(f""".section .rodata,"a"
.p2align 6
.amdhsa_kernel {KN}
  .amdhsa_next_free_vgpr {nv}
  .amdhsa_next_free_sgpr 102
  .amdhsa_accum_offset {(nv+3)//4*4}
  .amdhsa_group_segment_fixed_size 0
  .amdhsa_kernarg_size 56
  .amdhsa_user_sgpr_count 2
  .amdhsa_user_sgpr_kernarg_segment_ptr 1
  .amdhsa_system_sgpr_workgroup_id_x 1
.end_amdhsa_kernel""")
    open(fn, "w").write(a.text())
    return fn
if __name__ == "__main__":
    import mk
    cfgs = eval(open(sys.argv[1]).read())
    for name, kw in cfgs.items():
        fn = gen(f"x_{name}.s", **kw); mk.build(fn)
        print(fn, kw)
```

```python
import sys, struct
KN = "standalone__linear_kernel_rfa__decode_kernel"
def f2u(x): return struct.unpack("<I", struct.pack("<f", x))[0]
SCALE = 128.0 ** -0.25
LOG2E = 1.4426950408889634
C1 = SCALE * LOG2E
C2 = -0.5 * SCALE * SCALE * LOG2E
HEADER = """; Linear (random-feature) attention, decode step:
; Kernarg layout (56 bytes, pointers only, base s[0:1]):
;   K stream: S = K omega^T on the matrix unit, |k|^2 with dot products, phi(K) rounded to bf16 and kept in LDS, z += phi(K)^T 1.
;   V stream: starts when the wave's K stream ends. Rows are transposed with v_perm and multiplied by phi(K) on the matrix unit.
;             (eight sample waves post how they stand against a nominal clock line, which centres that line on this launch)
;             asks for its next tiles with large requests only and catches up. Nothing ever waits for the clock; the values
;        workspace: 16-byte granules {num, num, den, tag ^ the three}, the tag being agreed on through debug[0] in every launch.
"""
class Asm:
    def __init__(s): s.L = []
    def __call__(s, t): s.L.append(t)
    def text(s): return "\n".join(s.L) + "\n"

def gen(fn, stamps=False, cls='d', kfirst='M', vfirst='X', fl="nt", comments=True, waves=4, D=4, DK=None, spread=False, light=False, nodot=False, kinds=None, look2=True, ctl='on', theta=30, qmul=41, cmax=4, forced=None, mincnt=96, nostore=False, noload=False, stfl='sc1', pad=8, kd=0, vd=0, jl=17, tmax=28, e0=380, bk=218, bv=209, js=29, th2=None, startbig=True, dbglate=False, recen=(), cap=None, ths=None, bits=None, ths1=None, dbgrc=False):
    NWG = 256
    NT = 256 // waves
    STEP = 32768 * (waves // 4)
    DK = DK or D
    NS = D // 2
    NSK = DK // 2
    a = Asm()
    def cm(t):
        if comments: a("    ; " + t)
    PBASE, PWAVE = 0, NT * 256
    assert waves == 4 and D == 4 and DK == 4 and kfirst == 'M' and vfirst == 'X'
    KBASE, KWAVE = 65536, 16384
    CTL = KBASE + waves * KWAVE
    LDS = CTL + 64
    assert LDS <= 163840 and KWAVE >= 2176
    a(HEADER + f"; @launch grid=({NWG},1,1) block=({waves*64},1,1) lds={LDS}")
    a('.amdgcn_target "amdgcn-amd-amdhsa--gfx950"\n.text')
    a(f".globl {KN}\n.p2align 8\n.type {KN},@function\n{KN}:")
    vLANE, vKO, vVO, vT0, vT1, vT2, vT3 = 1, 2, 3, 4, 5, 6, 7
    vOM, vACC_C, vACC_X, vZ, vS, vT, vCC, vPQ = 8, 24, 56, 88, 92, 96, 100, 104
    vP = [108, 110]; vONE = 112; vSQ0, vSQ1, vCB, vXO = 114, 115, 116, 117
    vL, vR, vPW, vPR, vX, vBT, vLOOK, vFLAG = 118, 122, 126, 127, 128, 132, 148, 152
    vM = [156, 172]; vC = [188, 204]; vLT = 220
    vROW = 236
    nv = 244
    def r4(b): return f"v[{b}:{b+3}]"
    def r2(b): return f"v[{b}:{b+1}]"
    sK, sV, sOM, sQ, sWS, sDB = 20, 24, 28, 32, 44, 48
    sOK, sOV, sW, sCNT, sLB, sSELLO, sSELHI, sC1, sEPS = 36, 39, 37, 38, 53, 40, 41, 42, 43
    sOWN, sPAR, sTAG = 52, 54, 55
    WSP = 1 << 20
    TBL = WSP + 256 * 1024
    sCRED, sF, sOLD, sJ, sTM, sTMP, sC1p, sC2p, sROW = 57, [58, 59], 78, 79, 80, 81, 82, 83, 84
    sX0, sX1 = 85, 86
    sTOT = 87
    sCAP = 93
    BIAS = 1 << 20
    def srd(b): return f"s[{b}:{b+3}]"
    def stamp(i):
        if stamps: a(f"s_memrealtime s[60:61]\ns_waitcnt lgkmcnt(0)\ns_mov_b32 s{64+i}, s60")
    if stamps: a("s_memrealtime s[62:63]")
    a("s_load_dwordx8 s[4:11], s[0:1], 0\ns_load_dwordx4 s[12:15], s[0:1], 32\ns_load_dwordx2 s[16:17], s[0:1], 48")
    cm("workgroups past the data leave at once")
    a(f"s_cmp_ge_u32 s2, {NWG}\ns_cbranch_scc1 L_done")
    a(f"v_lshrrev_b32 v{vT0}, 6, v0\nv_and_b32 v{vLANE}, 63, v0")
    a(f"v_and_b32 v{vT1}, 15, v{vLANE}")
    a(f"v_lshrrev_b32 v{vT2}, 4, v{vLANE}")
    a(f"v_readfirstlane_b32 s{sW}, v{vT0}")
    cm("K (direct) lane offset: key(i)*256 + g*16 with key(i) = 4*(i&3) + (i>>2)")
    a(f"v_and_b32 v{vT0}, 3, v{vT1}\nv_lshlrev_b32 v{vT3}, 10, v{vT0}\nv_lshrrev_b32 v{vX}, 2, v{vT1}\nv_lshlrev_b32 v{vX+1}, 8, v{vX}")
    a(f"v_lshlrev_b32 v{vX+2}, 4, v{vT2}\nv_add3_u32 v{vKO}, v{vT3}, v{vX+1}, v{vX+2}")
    a(f"v_lshlrev_b32 v{vVO}, 4, v{vLANE}")
    cm("head, half and first tile offset")
    a("s_lshr_b32 s3, s2, 1")
    if not bits:
        a(f"s_and_b32 s18, s2, 1\ns_lshl_b32 s{sOK}, s3, 21")
        pb, w0b, w1b = {'d': (12, 13, 14), 'a': (14, 12, 13)}[cls]
        a(f"s_lshl_b32 s18, s18, {pb}\ns_add_u32 s{sOK}, s{sOK}, s18\ns_and_b32 s18, s{sW}, 1\ns_lshl_b32 s18, s18, {w0b}\ns_add_u32 s{sOK}, s{sOK}, s18")
        a(f"s_bfe_u32 s18, s{sW}, 0x10001\ns_lshl_b32 s18, s18, {w1b}\ns_add_u32 s{sOK}, s{sOK}, s18")
        a(f"s_mov_b32 s{sOV}, s{sOK}")
    sHB, sTK, sTV, sPP = 96, 97, 98, 99
    t_part = []
    if bits:
        a(f"s_lshl_b32 s{sHB}, s3, 21\ns_and_b32 s{sPP}, s2, 1")
        for i, b in enumerate(bits):
            if b[0] == 't': t_part.append((int(b[1]), 12 + i))
            else:
                src = {'p': f"s_mov_b32 s18, s{sPP}", 'w0': f"s_and_b32 s18, s{sW}, 1", 'w1': f"s_bfe_u32 s18, s{sW}, 0x10001"}[b]
                a(f"{src}\ns_lshl_b32 s18, s18, {12+i}\ns_add_u32 s{sHB}, s{sHB}, s18")
        a(f"s_mov_b32 s{sTK}, 0\ns_mov_b32 s{sTV}, 0\ns_mov_b32 s{sOK}, s{sHB}\ns_mov_b32 s{sOV}, s{sHB}")
        runs = []
        for tb, ab in sorted(t_part):
            if runs and runs[-1][0] + runs[-1][2] == tb and runs[-1][1] + runs[-1][2] == ab: runs[-1][2] += 1
            else: runs.append([tb, ab, 1])
    def advance(so, st):
        if not bits:
            a(f"s_add_u32 s{so}, s{so}, {STEP}"); return
        a(f"s_add_u32 s{st}, s{st}, 1\ns_mov_b32 s{so}, s{sHB}")
        for tb, ab, n in runs:
            a(f"s_bfe_u32 s18, s{st}, {(n << 16) | tb:#x}\ns_lshl_b32 s18, s18, {ab}\ns_add_u32 s{so}, s{so}, s18")
    a(f"s_lshl_b32 s19, s3, 8")
    a(f"s_mov_b32 s{sK+2}, 0x10000000\ns_mov_b32 s{sK+3}, 0x20000\ns_mov_b32 s{sV+2}, 0x10000000\ns_mov_b32 s{sV+3}, 0x20000")
    a(f"s_mov_b32 s{sOM+2}, 2048\ns_mov_b32 s{sOM+3}, 0x20000\ns_mov_b32 s{sQ+2}, 32768\ns_mov_b32 s{sQ+3}, 0x20000")
    a(f"s_mul_i32 s{sLB}, s{sW}, {KWAVE}\ns_add_u32 s{sLB}, s{sLB}, {KBASE}")
    cm("LDS-DMA source offsets: row (lane>>4), chunk (lane&15) ^ (4*(lane>>4) + j)")
    a(f"v_lshlrev_b32 v{vX+3}, 2, v{vT2}\nv_lshlrev_b32 v{vBT}, 8, v{vT2}")
    for j in range(4):
        a(f"v_add_u32 v{vBT+1}, {j}, v{vX+3}\nv_xor_b32 v{vBT+1}, v{vBT+1}, v{vT1}\nv_lshl_add_u32 v{vL+j}, v{vBT+1}, 4, v{vBT}")
    cm("omega offset (rows 8..15 duplicate rows 0..7), q offset g*16")
    a(f"v_and_b32 v{vBT+2}, 7, v{vLANE}\nv_lshlrev_b32 v{vBT+2}, 8, v{vBT+2}\nv_add_u32 v{vBT+2}, v{vBT+2}, v{vX+2}")
    a("s_waitcnt lgkmcnt(0)")
    if stamps: a("s_mov_b32 s64, s62")
    stamp(1)
    a(f"s_mov_b32 s{sK}, s6\ns_mov_b32 s{sK+1}, s7\ns_mov_b32 s{sV}, s8\ns_mov_b32 s{sV+1}, s9")
    a(f"s_mov_b32 s{sOM}, s10\ns_mov_b32 s{sOM+1}, s11\ns_mov_b32 s{sQ}, s4\ns_mov_b32 s{sQ+1}, s5")
    for j in range(4): a(f"buffer_load_dwordx4 {r4(vOM+4*j)}, v{vBT+2}, {srd(sOM)}, 0 offen offset:{64*j}")
    for j in range(4): a(f"buffer_load_dwordx4 {r4(vBT+4+4*j)}, v{vX+2}, {srd(sQ)}, s19 offen offset:{64*j}")
    vQ = vBT + 4
    kk = ['M', 'L'] if kfirst == 'M' else ['L', 'M']
    if kinds: kk = list(kinds)
    vk = ['X', 'C'] if vfirst == 'X' else ['C', 'X']
    def kkind(t): return kk[t & 1]
    def vkind(u): return vk[u & 1]
    def slot(t): return (t >> 1) % NS
    def kslot(t): return (t >> 1) % NSK
    def loadK(t):
        if kkind(t) == 'M':
            for j in range(4): a(f"buffer_load_dwordx4 {r4(vM[kslot(t)]+4*j)}, v{vKO}, {srd(sK)}, s{sOK} offen offset:{64*j} {fl}")
        else:
            a(f"s_add_u32 m0, s{sLB}, {4096*kslot(t)}\ns_nop 0")
            for j in range(4): a(f"buffer_load_dwordx4 v{vL+j}, {srd(sK)}, s{sOK} offen offset:{1024*j} {fl} lds")
        advance(sOK, sTK)
    def vbuf(u): return (vM if vkind(u) == 'X' else vC)[slot(u)]
    def loadV(u):
        b = vbuf(u)
        if vkind(u) == 'X':
            for r in range(4):
                for q in range(4): a(f"buffer_load_dword v{b+4*r+q}, v{vXO}, {srd(sV)}, s{sOV} offen offset:{1024*r+64*q} {fl}")
        else:
            for r in range(4): a(f"buffer_load_dwordx4 {r4(b+4*r)}, v{vVO}, {srd(sV)}, s{sOV} offen offset:{1024*r} {fl}")
        advance(sOV, sTV)
    def nK(t): return 4
    def nV(u): return 16 if vkind(u) == 'X' else 4
    for t in range(DK):
        if startbig and kkind(t) == 'M':
            a(f"s_add_u32 m0, s{sLB}, {4096*(2+kslot(t))}\ns_nop 0")
            for j in range(4): a(f"buffer_load_dwordx4 v{vL+j}, {srd(sK)}, s{sOK} offen offset:{1024*j} {fl} lds")
            advance(sOK, sTK)
        else: loadK(t)
    cm("remaining lane addresses and constants (overlap the first loads)")
    a(f"v_and_b32 v{vT0}, 3, v{vT1}\nv_xor_b32 v{vT0}, v{vT0}, v{vT2}\nv_lshrrev_b32 v{vT3}, 2, v{vT1}")
    a(f"v_and_b32 v{vX}, 3, v{vT1}\nv_lshlrev_b32 v{vX}, 10, v{vX}\nv_lshl_add_u32 v{vX}, v{vT3}, 8, v{vX}\nv_add_u32 v{vX}, s{sLB}, v{vX}")
    for j in range(4):
        a(f"v_xor_b32 v{vX+1}, {j}, v{vT3}\nv_lshl_add_u32 v{vX+1}, v{vX+1}, 2, v{vT0}\nv_lshl_add_u32 v{vR+j}, v{vX+1}, 4, v{vX}")
    a(f"v_and_b32 v{vT0}, 7, v{vLANE}\nv_lshl_add_u32 v{vT0}, v{vT2}, 3, v{vT0}\nv_lshlrev_b32 v{vT0}, 3, v{vT0}\ns_mul_i32 s18, s{sW}, {PWAVE}\nv_add_u32 v{vPW}, s18, v{vT0}\nv_mov_b32 v{vPR}, v{vPW}")
    a(f"s_mov_b32 s{sWS}, s16\ns_mov_b32 s{sWS+1}, s17\ns_mov_b32 s{sWS+2}, {TBL + 16*2048}\ns_mov_b32 s{sWS+3}, 0x20000")
    a(f"s_mov_b32 s{sDB}, s14\ns_mov_b32 s{sDB+1}, s15\ns_mov_b32 s{sDB+2}, 256\ns_mov_b32 s{sDB+3}, 0x20000")
    a(f"s_lshl_b32 s{sOWN}, s2, 10\ns_add_u32 s{sOWN}, s{sOWN}, {WSP}\ns_xor_b32 s{sPAR}, s{sOWN}, 1024")
    a(f"s_mov_b32 s{sSELLO}, 0x05040100\ns_mov_b32 s{sSELHI}, 0x07060302\ns_mov_b32 s{sC1}, {f2u(C1):#x}\ns_mov_b32 s{sEPS}, {f2u(1e-6):#x}")
    cm("workgroup 0, wave 0 proposes this launch's tag (a clock value, never 0): debug[0] keeps the first proposal it gets")
    a(f"s_or_b32 s56, s2, s{sW}\ns_cmp_lg_u32 s56, 0\ns_cbranch_scc1 L_notag")
    a("s_memrealtime s[56:57]\ns_waitcnt lgkmcnt(0)\ns_or_b32 s56, s56, 1")
    a(f"v_mov_b32 v{vFLAG+2}, s56\nv_mov_b32 v{vFLAG+3}, 0\nv_mov_b32 v{vT0}, 0\ns_mov_b64 exec, 1")
    a(f"buffer_atomic_cmpswap v[{vFLAG+2}:{vFLAG+3}], v{vT0}, {srd(sDB)}, 0 offen\ns_mov_b64 exec, -1")
    a("L_notag:")
    for i in range(32): a(f"v_mov_b32 v{vACC_C+i}, 0")
    for i in range(4): a(f"v_mov_b32 v{vZ+i}, 0")
    for i in range(4): a(f"v_mov_b32 v{vCC+i}, {f2u(-1.5):#x}")
    a(f"v_mov_b32 v{vONE}, 0x3f803f80\nv_mov_b32 v{vONE+1}, 0x3f803f80\nv_mov_b32 v{vCB}, {f2u(C2):#x}")
    if stamps: a("s_mov_b32 s75, 0")
    a(f"s_mov_b32 s{sCRED}, 0\ns_mov_b32 s{sF[0]}, 0\ns_mov_b32 s{sF[1]}, 0\ns_mov_b32 s{sJ}, 0\ns_mov_b32 s{sTAG}, 0\ns_mov_b32 s{sTOT}, 0")
    a(f"s_mov_b32 s{sTM}, 0\ns_mov_b32 s{sTMP}, 0\ns_mov_b32 s{sC1p}, 0\ns_mov_b32 s{sC2p}, 0")
    if startbig: a(f"s_mov_b32 s{sF[0]}, 1\ns_mov_b32 s{sF[1]}, 1")
    if ths1 is not None: a(f"s_mov_b32 s100, {ths}\ns_mov_b32 s101, {ths1}\ns_bitcmp1_b32 s2, 0\ns_cselect_b32 s100, s101, s100")
    if dbgrc: a("s_mov_b32 s101, 99")
    if cap is not None: a(f"s_mov_b32 s{sCAP}, {cap}")
    a(f"s_mov_b32 s{sROW}, {e0}")
    if forced is not None:
        a(f"s_cmp_lt_u32 s2, {forced}\ns_cselect_b32 s{sCRED}, 0x7fffffff, 0")
    a(f"v_mov_b32 v{vFLAG+1}, {CTL}")
    a(f"v_mov_b32 v{vT0}, 0\nds_write_b32 v{vFLAG+1}, v{vT0}")
    cm("phi(q): D[m][*] = omega . q, plus the squared norm through an f32 MFMA")
    a(f"s_waitcnt vmcnt({4*DK})")
    stamp(3)
    for j in range(4): a(f"v_mfma_f32_16x16x32_bf16 {r4(vS)}, {r4(vOM+4*j)}, {r4(vQ+4*j)}, {'0' if j==0 else r4(vS)}")
    def sq(src):
        for i in range(16):
            acc = vSQ0 + (i & 1)
            a(f"v_dot2_f32_bf16 v{acc}, v{src+i}, v{src+i}, {'0' if i < 2 else 'v%d' % acc}")
        a(f"s_nop 2\nv_add_f32 v{vSQ0}, v{vSQ0}, v{vSQ1}\ns_nop 1")
    sq(vQ)
    a(f"v_mfma_f32_16x16x4_f32 {r4(vT)}, v{vCB}, v{vSQ0}, {r4(vCC)}\ns_nop 10")
    def phi(dst):
        for r in range(4): a(f"v_fma_f32 v{dst+r}, v{vS+r}, s{sC1}, v{vT+r}")
        for r in range(4): a(f"v_exp_f32 v{dst+r}, v{dst+r}")
        for r in range(4): a(f"v_add_f32 v{dst+r}, s{sEPS}, v{dst+r}")
    phi(vPQ)
    a(f"v_cmp_gt_u32 vcc, 32, v{vLANE}\ns_nop 1")
    for r in range(4): a(f"v_cndmask_b32 v{vPQ+r}, 0, v{vPQ+r}, vcc")
    lab2 = [0]
    def newlab(p):
        lab2[0] += 1
        return f"L_{p}{lab2[0]}"
    def waitdyn(base, flags):
        if not flags:
            a(f"s_waitcnt vmcnt({base})"); return
        e = newlab("we")
        if len(flags) == 1:
            l = newlab("wa")
            a(f"s_cmp_eq_u32 s{flags[0]}, 0\ns_cbranch_scc1 {l}\ns_waitcnt vmcnt({base+4})\ns_branch {e}\n{l}:\ns_waitcnt vmcnt({base+8})\n{e}:")
        else:
            l1, l2 = newlab("wa"), newlab("wb")
            a(f"s_add_u32 s{sX0}, s{flags[0]}, s{flags[1]}\ns_cmp_eq_u32 s{sX0}, 0\ns_cbranch_scc1 {l1}\ns_cmp_eq_u32 s{sX0}, 1\ns_cbranch_scc1 {l2}")
            a(f"s_waitcnt vmcnt({base+8})\ns_branch {e}\n{l2}:\ns_waitcnt vmcnt({base+12})\ns_branch {e}\n{l1}:\ns_waitcnt vmcnt({base+16})\n{e}:")
    def choose(sl, small, large):
        l, e = newlab("big"), newlab("cj")
        a(f"s_cmp_lg_u32 s{sCRED}, 0\ns_cbranch_scc1 {l}")
        small(); a(f"s_mov_b32 s{sF[sl]}, 0\ns_branch {e}\n{l}:")
        large(); a(f"s_mov_b32 s{sF[sl]}, 1\ns_sub_u32 s{sCRED}, s{sCRED}, 1")
        if stamps: a("s_add_u32 s75, s75, 1")
        a(f"{e}:")
    def loadK_flex(sl):
        def small():
            for j in range(4): a(f"buffer_load_dwordx4 {r4(vM[sl]+4*j)}, v{vKO}, {srd(sK)}, s{sOK} offen offset:{64*j} {fl}")
        def large():
            a(f"s_add_u32 m0, s{sLB}, {4096*(2+sl)}\ns_nop 0")
            for j in range(4): a(f"buffer_load_dwordx4 v{vL+j}, {srd(sK)}, s{sOK} offen offset:{1024*j} {fl} lds")
        choose(sl, small, large)
        advance(sOK, sTK)
    def loadV_flex(sl):
        b = vM[sl]
        def small():
            for r in range(4):
                for hf in range(2): a(f"buffer_load_dwordx2 {r2(b+4*r+2*hf)}, v{vVO}, {srd(sV)}, s{sOV} offen offset:{1024*r+8*hf} {fl}")
        def large():
            for r in range(4): a(f"buffer_load_dwordx4 {r4(b+4*r)}, v{vVO}, {srd(sV)}, s{sOV} offen offset:{1024*r} {fl}")
        choose(sl, small, large)
        advance(sOV, sTV)
    def ktile(t, wait, refill):
        wait()
        if kkind(t) == 'M':
            sl = kslot(t); kb = vM[sl]
            l = newlab("km")
            a(f"s_cmp_eq_u32 s{sF[sl]}, 0\ns_cbranch_scc1 {l}")
            for j in range(4): a(f"ds_read_b128 {r4(kb+4*j)}, v{vR+j} offset:{4096*(2+sl)}")
            a(f"s_waitcnt lgkmcnt(0)\n{l}:")
        else:
            kb = vLT
            for j in range(4): a(f"ds_read_b128 {r4(vLT+4*j)}, v{vR+j} offset:{4096*kslot(t)}")
            a("s_waitcnt lgkmcnt(0)")
            refill(); refill = None
        for j in range(4): a(f"v_mfma_f32_16x16x32_bf16 {r4(vS)}, {r4(kb+4*j)}, {r4(vOM+4*j)}, {'0' if j==0 else r4(vS)}")
        if refill:
            for i in range(16):
                acc = vSQ0 + (i & 1)
                a(f"v_dot2_f32_bf16 v{acc}, v{kb+i}, v{kb+i}, {'0' if i < 2 else 'v%d' % acc}")
            refill()
            a(f"v_add_f32 v{vSQ0}, v{vSQ0}, v{vSQ1}\ns_nop 1")
            a(f"v_mfma_f32_16x16x4_f32 {r4(vT)}, v{vSQ0}, v{vCB}, {r4(vCC)}\ns_nop 9")
        else:
            sq(kb)
            a(f"v_mfma_f32_16x16x4_f32 {r4(vT)}, v{vSQ0}, v{vCB}, {r4(vCC)}\ns_nop 9")
        phi(vX)
        a(f"v_cvt_pk_bf16_f32 v{vP[0]}, v{vX}, v{vX+1}\nv_cvt_pk_bf16_f32 v{vP[0]+1}, v{vX+2}, v{vX+3}")
        a(f"ds_write_b64 v{vPW}, {r2(vP[0])}\nv_add_u32 v{vPW}, 256, v{vPW}")
        a(f"v_mfma_f32_16x16x16_bf16 {r4(vZ)}, {r2(vP[0])}, {r2(vONE)}, {r4(vZ)}")
    def control_once(where):
        if where == 'k':
            e, l1 = newlab("o"), newlab("o")
            a(f"s_cmp_lg_u32 s{sW}, 0\ns_cbranch_scc1 {e}")
            a(f"s_cmp_lg_u32 s{sJ}, 1\ns_cbranch_scc1 {l1}\nv_mov_b32 v{vT0}, 0\nbuffer_load_dword v{vFLAG}, v{vT0}, {srd(sDB)}, 0 offen\n{l1}:")
            a(f"s_cmp_lg_u32 s{sJ}, 3\ns_cbranch_scc1 {e}\nv_readfirstlane_b32 s{sTAG}, v{vFLAG}\n{e}:")
        elif where == 't':
            e = newlab("o")
            a(f"s_cmp_lg_u32 s{sW}, 0\ns_cbranch_scc1 {e}\ns_cmp_eq_u32 s{sTAG}, 0\ns_cbranch_scc1 {e}")
            a(f"s_memrealtime s[60:61]\ns_waitcnt lgkmcnt(0)\ns_sub_u32 s60, s60, s{sTAG}\ns_mov_b32 s{sTM}, s60\ns_xor_b32 s61, s60, s{sTAG}")
            a(f"v_mov_b32 v{vROW}, s60\nv_mov_b32 v{vROW+1}, s61\ns_lshl_b32 s{sX0}, s2, 3\nv_mov_b32 v{vT0}, s{sX0}\ns_mov_b32 s{sROW}, {TBL}")
            if not nostore: a(f"s_mov_b64 exec, 1\nbuffer_store_dwordx2 {r2(vROW)}, v{vT0}, {srd(sWS)}, s{sROW} offen {stfl}\ns_mov_b64 exec, -1")
            a(f"{e}:")
        else:
            e, l1, l2, l3 = newlab("o"), newlab("o"), newlab("o"), newlab("o")
            a(f"s_min_u32 s{sCRED}, s{sTOT}, 2\ns_sub_u32 s{sTOT}, s{sTOT}, s{sCRED}")
            a(f"s_cmp_lg_u32 s{sJ}, {jl+2}\ns_cbranch_scc1 {l3}")
            a(f"ds_read_b32 v{vT0}, v{vFLAG+1}\ns_waitcnt lgkmcnt(0)\nv_readfirstlane_b32 s{sTOT}, v{vT0}\ns_nop 3\n{l3}:")
            a(f"s_cmp_lg_u32 s{sW}, 0\ns_cbranch_scc1 {e}\ns_cmp_eq_u32 s{sTM}, 0\ns_cbranch_scc1 {e}")
            a(f"s_cmp_lg_u32 s{sJ}, {jl}\ns_cbranch_scc1 {l1}")
            a(f"s_mov_b32 s{sROW}, {TBL}\nv_lshlrev_b32 v{vT0}, 5, v{vLANE}\ns_nop 0")
            if not noload: a(f"buffer_load_dwordx4 {r4(vROW)}, v{vT0}, {srd(sWS)}, s{sROW} offen\nbuffer_load_dwordx4 {r4(vROW+4)}, v{vT0}, {srd(sWS)}, s{sROW} offen offset:16")
            a(f"s_branch {e}\n{l1}:\ns_cmp_lg_u32 s{sJ}, {jl+1}\ns_cbranch_scc1 {e}")
            a(f"v_mov_b32 v{vT0}, 0\nv_mov_b32 v{vT1}, 0")
            for i in range(4):
                a(f"v_xor_b32 v{vT2}, v{vROW+2*i}, v{vROW+2*i+1}\nv_cmp_eq_u32 vcc, s{sTAG}, v{vT2}\ns_nop 1\nv_cndmask_b32 v{vT2}, 0, v{vROW+2*i}, vcc\nv_add_u32 v{vT0}, v{vT0}, v{vT2}\nv_addc_co_u32 v{vT1}, vcc, 0, v{vT1}, vcc")
            a(f"v_mov_b32 v{vT2}, 0\nv_mov_b32 v{vT3}, 0\nds_write_b64 v{vFLAG+1}, v[{vT2}:{vT3}] offset:8")
            a(f"ds_add_u32 v{vFLAG+1}, v{vT0} offset:8\nds_add_u32 v{vFLAG+1}, v{vT1} offset:12\nds_read_b64 v[{vT2}:{vT3}], v{vFLAG+1} offset:8\ns_waitcnt lgkmcnt(0)")
            a(f"v_cvt_f32_u32 v{vT0}, v{vT2}\nv_cvt_f32_u32 v{vT1}, v{vT3}\nv_rcp_f32 v{vT1}, v{vT1}\ns_nop 0\nv_mul_f32 v{vT0}, v{vT0}, v{vT1}\nv_cvt_u32_f32 v{vT0}, v{vT0}\ns_nop 0")
            a(f"v_readfirstlane_b32 s{sX0}, v{vT0}\nv_readfirstlane_b32 s{sX1}, v{vT3}\ns_nop 3")
            a(f"s_sub_u32 s{sX0}, s{sTM}, s{sX0}\ns_sub_u32 s{sX0}, s{sX0}, {theta}")
            a(f"s_mul_i32 s60, s{sX0}, {qmul}\ns_ashr_i32 s60, s60, 10\ns_add_u32 s60, s60, 1\ns_cmp_gt_i32 s{sX0}, 0\ns_cselect_b32 s60, s60, 0\ns_min_u32 s60, s60, {tmax}")
            a(f"s_cmp_ge_u32 s{sX1}, {mincnt}\ns_cselect_b32 s60, s60, 0\nv_mov_b32 v{vT0}, s60\nds_write_b32 v{vFLAG+1}, v{vT0}")
            a(f"{e}:")
    def control(where='k'):
        if ctl == 'once':
            return control_once(where)
        if ctl == 'self':
            e1, e2 = newlab("st"), newlab("st")
            cm("group of four tiles: the clock is asked for here and read after the second tile")
            a("s_memrealtime s[60:61]")
            for ci, c in enumerate(recen):
                if (where == 'v') == (c + 2 >= 16):
                    l_ = newlab("rl")
                    a(f"s_cmp_lg_u32 s{sJ}, {c+2}\ns_cbranch_scc1 {l_}\nv_and_b32 v{vT0}, 7, v{vLANE}\nv_lshlrev_b32 v{vT0}, 3, v{vT0}")
                    a(f"s_mov_b32 s{sX1}, {TBL + 128*ci}\nbuffer_load_dwordx2 {r2(vROW)}, v{vT0}, {srd(sWS)}, s{sX1} offen\n{l_}:")
            if where == 'k':
                a(f"s_cmp_lg_u32 s{sJ}, 1\ns_cbranch_scc1 {e1}\nv_mov_b32 v{vT0}, 0\nbuffer_load_dword v{vFLAG}, v{vT0}, {srd(sDB)}, 0 offen\n{e1}:")
                a(f"s_cmp_lg_u32 s{sJ}, 2\ns_cbranch_scc1 {e2}\nv_readfirstlane_b32 s{sTAG}, v{vFLAG}\n{e2}:")
            return
        if ctl == 'static':
            e = newlab("cs")
            a(f"s_bitcmp1_b32 s{sJ}, 0\ns_cbranch_scc1 {e}\ns_cmp_lt_u32 s{sJ}, 15\ns_cselect_b32 s{sCRED}, {kd}, {vd}\n{e}:")
            return
        if ctl != 'on': return
        odd, end = newlab("co"), newlab("ce")
        a(f"s_bitcmp1_b32 s{sJ}, 0\ns_cbranch_scc1 {odd}")
        a(f"ds_read_b32 v{vT0}, v{vFLAG+1}\ns_waitcnt lgkmcnt(0)\nv_readfirstlane_b32 s{sX0}, v{vT0}\ns_nop 3")
        a(f"s_lshr_b32 s{sX1}, s{sX0}, 8\ns_and_b32 s{sX0}, s{sX0}, 0xff\ns_cmp_eq_u32 s{sX1}, s{sJ}\ns_cselect_b32 s{sCRED}, s{sX0}, 0")
        a(f"s_cmp_lg_u32 s{sW}, 0\ns_cbranch_scc1 {end}")
        nt = newlab("ct")
        a(f"s_cmp_lg_u32 s{sTAG}, 0\ns_cbranch_scc1 {nt}")
        a(f"s_cmp_eq_u32 s{sJ}, 0\ns_cbranch_scc1 {end}")
        a(f"v_readfirstlane_b32 s{sTAG}, v{vFLAG}\ns_nop 3\ns_cmp_eq_u32 s{sTAG}, 0\ns_cbranch_scc1 {end}")
        a(f"{nt}:")
        a(f"s_memrealtime s[60:61]\ns_waitcnt lgkmcnt(0)\ns_sub_u32 s60, s60, s{sTAG}\ns_mov_b32 s{sTMP}, s{sTM}\ns_mov_b32 s{sTM}, s60")
        a(f"s_lshr_b32 s{sROW}, s{sJ}, 1\ns_lshl_b32 s{sROW}, s{sROW}, 11\ns_add_u32 s{sROW}, s{sROW}, {TBL}")
        a(f"s_xor_b32 s61, s60, s{sTAG}\nv_mov_b32 v{vROW}, s60\nv_mov_b32 v{vROW+1}, s61\ns_lshl_b32 s{sX0}, s2, 3\nv_mov_b32 v{vT0}, s{sX0}")
        if not nostore: a(f"s_mov_b64 exec, 1\nbuffer_store_dwordx2 {r2(vROW)}, v{vT0}, {srd(sWS)}, s{sROW} offen {stfl}\ns_mov_b64 exec, -1")
        a(f"s_sub_u32 s{sROW}, s{sROW}, 2048\nv_lshlrev_b32 v{vT0}, 5, v{vLANE}\ns_nop 0")
        if not noload: a(f"buffer_load_dwordx4 {r4(vROW)}, v{vT0}, {srd(sWS)}, s{sROW} offen\nbuffer_load_dwordx4 {r4(vROW+4)}, v{vT0}, {srd(sWS)}, s{sROW} offen offset:16")
        a(f"s_branch {end}")
        a(f"{odd}:\ns_cmp_lg_u32 s{sW}, 0\ns_cbranch_scc1 {end}")
        tagask = newlab("cq")
        a(f"s_cmp_eq_u32 s{sTAG}, 0\ns_cbranch_scc1 {tagask}")
        a(f"s_cmp_eq_u32 s{sTMP}, 0\ns_cbranch_scc1 {end}")
        cm("valid entries carry time ^ tag in their second word")
        a(f"v_mov_b32 v{vT0}, 0\nv_mov_b32 v{vT1}, 0")
        for i in range(4):
            a(f"v_xor_b32 v{vT2}, v{vROW+2*i}, v{vROW+2*i+1}\nv_cmp_eq_u32 vcc, s{sTAG}, v{vT2}\ns_nop 1\nv_cndmask_b32 v{vT2}, 0, v{vROW+2*i}, vcc\nv_add_u32 v{vT0}, v{vT0}, v{vT2}\nv_addc_co_u32 v{vT1}, vcc, 0, v{vT1}, vcc")
        a(f"v_mov_b32 v{vT2}, 0\nv_mov_b32 v{vT3}, 0\nds_write_b64 v{vFLAG+1}, v[{vT2}:{vT3}] offset:8")
        a(f"ds_add_u32 v{vFLAG+1}, v{vT0} offset:8\nds_add_u32 v{vFLAG+1}, v{vT1} offset:12\nds_read_b64 v[{vT2}:{vT3}], v{vFLAG+1} offset:8\ns_waitcnt lgkmcnt(0)")
        a(f"v_cvt_f32_u32 v{vT0}, v{vT2}\nv_cvt_f32_u32 v{vT1}, v{vT3}\nv_rcp_f32 v{vT1}, v{vT1}\ns_nop 0\nv_mul_f32 v{vT0}, v{vT0}, v{vT1}\nv_cvt_u32_f32 v{vT0}, v{vT0}\ns_nop 0")
        a(f"v_readfirstlane_b32 s{sX0}, v{vT0}\nv_readfirstlane_b32 s{sX1}, v{vT3}\ns_nop 3")
        cm("lag = own time - mean - credits still in the pipe - dead band")
        a(f"s_sub_u32 s{sX0}, s{sTMP}, s{sX0}\ns_add_u32 s60, s{sC1p}, s{sC2p}\ns_mul_i32 s60, s60, 25\ns_sub_u32 s{sX0}, s{sX0}, s60\ns_sub_u32 s{sX0}, s{sX0}, {theta}")
        a(f"s_mul_i32 s60, s{sX0}, {qmul}\ns_ashr_i32 s60, s60, 10\ns_add_u32 s60, s60, 1\ns_cmp_gt_i32 s{sX0}, 0\ns_cselect_b32 s60, s60, 0\ns_min_u32 s60, s60, {cmax}")
        a(f"s_cmp_ge_u32 s{sX1}, {mincnt}\ns_cselect_b32 s60, s60, 0")
        a(f"s_mov_b32 s{sC2p}, s{sC1p}\ns_mov_b32 s{sC1p}, s60")
        a(f"s_add_u32 s61, s{sJ}, 1\ns_lshl_b32 s61, s61, 8\ns_or_b32 s60, s60, s61\nv_mov_b32 v{vT0}, s60\nds_write_b32 v{vFLAG+1}, v{vT0}")
        a(f"s_branch {end}")
        a(f"{tagask}:\nv_mov_b32 v{vT0}, 0\nbuffer_load_dword v{vFLAG}, v{vT0}, {srd(sDB)}, 0 offen")
        a(f"{end}:\n")
    def pace(step, where='k'):
        if ctl != 'self': return
        e = newlab("sp")
        cm("a wave that lags gets credits: its next flexible tiles use large requests")
        a(f"s_mov_b32 s{sCRED}, 0\ns_cmp_eq_u32 s{sTAG}, 0\ns_cbranch_scc1 {e}")
        a(f"s_sub_u32 s60, s60, s{sTAG}\ns_sub_u32 s60, s60, s{sROW}")
        for ci, c in enumerate(recen):
            if (where == 'v') == (c >= 16):
                cm("eight sample waves post where they stand")
                l_ = newlab("rp")
                a(f"s_cmp_lg_u32 s{sJ}, {c}\ns_cbranch_scc1 {l_}\ns_cmp_lg_u32 s{sW}, 0\ns_cbranch_scc1 {l_}\ns_mul_i32 s61, s2, 1986\ns_lshr_b32 s61, s61, 16")
                a(f"s_mul_i32 s{sX0}, s61, 33\ns_cmp_lg_u32 s{sX0}, s2\ns_cbranch_scc1 {l_}")
                a(f"s_add_u32 s{sX0}, s60, {BIAS}\ns_xor_b32 s{sX1}, s{sX0}, s{sTAG}\nv_mov_b32 v{vROW}, s{sX0}\nv_mov_b32 v{vROW+1}, s{sX1}\ns_lshl_b32 s61, s61, 3\nv_mov_b32 v{vT0}, s61")
                a(f"s_mov_b32 s{sX1}, {TBL + 128*ci}\ns_mov_b64 exec, 1\nbuffer_store_dwordx2 {r2(vROW)}, v{vT0}, {srd(sWS)}, s{sX1} offen sc1\ns_mov_b64 exec, -1\n{l_}:")
            if (where == 'v') == (c + 3 >= 16):
                cm("every wave centres its clock line on the mean of the samples (skipped unless all eight carry this launch's tag)")
                l_ = newlab("rc")
                a(f"s_cmp_lg_u32 s{sJ}, {c+3}\ns_cbranch_scc1 {l_}\ns_mov_b32 s{sX0}, 0\ns_mov_b32 s{sX1}, 0")
                for i in range(8):
                    a(f"v_readlane_b32 s61, v{vROW}, {i}\nv_readlane_b32 s94, v{vROW+1}, {i}\ns_nop 0\ns_xor_b32 s94, s94, s61\ns_cmp_eq_u32 s94, s{sTAG}\ns_cselect_b32 s61, s61, 0\ns_cselect_b32 s94, 1, 0\ns_add_u32 s{sX0}, s{sX0}, s61\ns_add_u32 s{sX1}, s{sX1}, s94")
                if dbgrc: a(f"s_mov_b32 s101, s{sX1}")
                a(f"s_cmp_lt_u32 s{sX1}, 8\ns_cbranch_scc1 {l_}\ns_lshr_b32 s{sX0}, s{sX0}, 3\ns_sub_u32 s{sX0}, s{sX0}, {BIAS}\ns_add_u32 s{sROW}, s{sROW}, s{sX0}\ns_sub_u32 s60, s60, s{sX0}\n{l_}:")
        if stamps or dbglate:
            for jj, st in ((4, 68), (12, 67), (20, 71), (28, 72)):
                l_ = newlab("dg"); a(f"s_cmp_lg_u32 s{sJ}, {jj}\ns_cbranch_scc1 {l_}\ns_mov_b32 s{st+20}, s60\n{l_}:")
        a(f"s_cmp_gt_i32 s60, {theta}\ns_cselect_b32 s{sCRED}, 2, 0")
        if th2 is not None: a(f"s_cmp_gt_i32 s60, {th2}\ns_cselect_b32 s61, 1, 0\ns_max_u32 s{sCRED}, s{sCRED}, s61")
        if cap is not None: a(f"s_min_u32 s{sCRED}, s{sCRED}, s{sCAP}\ns_sub_u32 s{sCAP}, s{sCAP}, s{sCRED}")
        if ths is not None and where == 'v':
            l2 = newlab("ss")
            a(f"s_cmp_lt_u32 s{sJ}, {js}\ns_cbranch_scc1 {l2}\ns_cmp_gt_i32 s60, {('s100' if ths1 is not None else ths)}\ns_cselect_b32 s{sCRED}, 2, s{sCRED}\n{l2}:")
            a(f"{e}:\ns_add_u32 s{sROW}, s{sROW}, {step}")
        else:
            a(f"{e}:\ns_cmp_ge_u32 s{sJ}, {js}\ns_cselect_b32 s{sCRED}, 2, s{sCRED}\ns_add_u32 s{sROW}, s{sROW}, {step}")
    def nextJ():
        if ctl in ('on', 'static', 'once', 'self'): a(f"s_add_u32 s{sJ}, s{sJ}, 1")
    cm("K phase: tiles alternate between direct MFMA-layout loads and LDS staged rows")
    NIT = (NT - DK) // DK
    a(f"s_mov_b32 s{sCNT}, {NIT}\nL_kloop:")
    control()
    for t in range(DK):
        ktile(t, lambda: waitdyn(12, []), (lambda t=t: loadK_flex(kslot(t))) if kkind(t) == 'M' else (lambda t=t: loadK(t)))
        if t == 1: pace(bk)
    nextJ()
    a(f"s_sub_u32 s{sCNT}, s{sCNT}, 1\ns_cmp_lg_u32 s{sCNT}, 0\ns_cbranch_scc1 L_kloop")
    cm("last four K tiles: their refills start the V stream")
    control('t')
    ktile(60, lambda: waitdyn(12, []), lambda: loadV_flex(0))
    ktile(61, lambda: waitdyn(8, [sF[0]]), lambda: loadV(1))
    pace(bk)
    ktile(62, lambda: waitdyn(8, [sF[0]]), lambda: loadV_flex(1))
    ktile(63, lambda: waitdyn(4, [sF[0], sF[1]]), lambda: loadV(3))
    nextJ()
    stamp(2)
    lab = [0]
    def w0only(body):
        lab[0] += 1
        a(f"s_cmp_lg_u32 s{sW}, 0\ns_cbranch_scc1 L_w0_{lab[0]}")
        body()
        a(f"L_w0_{lab[0]}:")
    def readP(u): a(f"ds_read_b64 {r2(vP[u & 1])}, v{vPR}\nv_add_u32 v{vPR}, 256, v{vPR}")
    def vtile(u, wait, refill, hook=None, last=False):
        flex = vkind(u) == 'X'; sl = slot(u)
        b = vbuf(u); P = vP[u & 1]
        if wait: wait()
        if hook: hook()
        def perms(q):
            a(f"v_perm_b32 v{vBT+4*q+0}, v{b+4+q}, v{b+q}, s{sSELLO}")
            a(f"v_perm_b32 v{vBT+4*q+1}, v{b+12+q}, v{b+8+q}, s{sSELLO}")
            a(f"v_perm_b32 v{vBT+4*q+2}, v{b+4+q}, v{b+q}, s{sSELHI}")
            a(f"v_perm_b32 v{vBT+4*q+3}, v{b+12+q}, v{b+8+q}, s{sSELHI}")
        def pv(acc, e): a(f"v_mfma_f32_16x16x16_bf16 {r4(acc+4*e)}, {r2(P)}, {r2(vBT+2*e)}, {r4(acc+4*e)}")
        if refill and flex:
            for q in range(4): perms(q)
            loadV_flex(sl)
            a("s_waitcnt lgkmcnt(0)")
            for e in range(8): pv(vACC_C, e)
            readP(u + 1)
        elif refill:
            for q in range(4): perms(q)
            loadV(u)
            a("s_waitcnt lgkmcnt(0)")
            for e in range(8): pv(vACC_C, e)
            readP(u + 1)
        else:
            a("s_waitcnt lgkmcnt(0)")
            acc = vACC_C
            perms(0); perms(1); pv(acc,0); pv(acc,1); perms(2); pv(acc,2); pv(acc,3); perms(3); pv(acc,4); pv(acc,5); pv(acc,6); pv(acc,7)
            if not last: readP(u + 1)
    def wv(u): return sum(nV(x) for x in range(u + 1, min(u + D, NT)))
    cm("V phase")
    readP(0)
    a(f"s_mov_b32 s{sCNT}, {(NT - D) // D}\nL_vloop:")
    control('v')
    vw = [lambda: waitdyn(8, [sF[1]]), lambda: waitdyn(4, [sF[0], sF[1]]), lambda: waitdyn(8, [sF[0]]), lambda: waitdyn(4, [sF[0], sF[1]])]
    for u in range(D):
        vtile(u, vw[u], True)
        if u == 1: pace(bv, 'v')
    nextJ()
    a(f"s_sub_u32 s{sCNT}, s{sCNT}, 1\ns_cmp_lg_u32 s{sCNT}, 0\ns_cbranch_scc1 L_vloop")
    def h_tag(): w0only(lambda: a(f"v_mov_b32 v{vT0}, 0\nbuffer_load_dword v{vFLAG}, v{vT0}, {srd(sDB)}, 0 offen"))
    def h_look(): w0only(lambda: a(f"buffer_load_dwordx4 {r4(vLOOK)}, v{vVO}, {srd(sWS)}, s{sPAR} offen sc1"))
    RB = KBASE
    def reduce_set(acc, kind):
        for e in range(8):
            bb = acc + 4*e
            a(f"v_mul_f32 v{vLT+e}, v{vPQ}, v{bb}")
            for r in range(1, 4): a(f"v_fmac_f32 v{vLT+e}, v{vPQ+r}, v{bb+r}")
        a("s_mov_b32 exec_hi, 0")
        if kind == 'C':
            a(f"ds_write_b128 v{vT2}, {r4(vLT)}\nds_write_b128 v{vT2}, {r4(vLT+4)} offset:16")
        else:
            for q in range(4): a(f"ds_write_b64 v{vT3}, {r2(vLT+2*q)} offset:{1024+128*q}")
        a("s_mov_b32 exec_hi, -1")
    a(f"v_lshlrev_b32 v{vT2}, 5, v{vLANE}\nv_add_u32 v{vT2}, s{sLB}, v{vT2}")
    a(f"v_lshrrev_b32 v{vT3}, 4, v{vLANE}\nv_lshlrev_b32 v{vT3}, 9, v{vT3}\nv_and_b32 v{vT1}, 15, v{vLANE}\nv_lshl_add_u32 v{vT3}, v{vT1}, 3, v{vT3}\nv_add_u32 v{vT3}, s{sLB}, v{vT3}")
    lastkind = vkind(NT-1); otherkind = vkind(NT-2)
    accof = {'C': vACC_C, 'X': vACC_X}
    vtile(60, lambda: waitdyn(8, [sF[1]]), False, h_tag)
    vtile(61, lambda: waitdyn(4, [sF[1]]), False)
    vtile(62, lambda: waitdyn(4, []), False)
    cm("the denominator goes to LDS while the last tile is in flight")
    a(f"v_mul_f32 v{vX}, v{vPQ}, v{vZ}")
    for r in range(1, 4): a(f"v_fmac_f32 v{vX}, v{vPQ+r}, v{vZ+r}")
    a(f"v_lshlrev_b32 v{vT1}, 2, v{vLANE}\nv_add_u32 v{vT1}, s{sLB}, v{vT1}\ns_mov_b32 exec_hi, 0\nds_write_b32 v{vT1}, v{vX} offset:2048\ns_mov_b32 exec_hi, -1")
    cm("wave 0 takes an early look at the partner's slot; the look is younger than the last V tile")
    a(f"s_cmp_lg_u32 s{sW}, 0\ns_cbranch_scc1 L_nolook")
    a(f"buffer_load_dwordx4 {r4(vLOOK)}, v{vVO}, {srd(sWS)}, s{sPAR} offen sc1\ns_waitcnt vmcnt(1)\ns_branch L_looked")
    a("L_nolook:\ns_waitcnt vmcnt(0)\nL_looked:")
    vtile(NT-1, None, False, None, last=True)
    stamp(5)
    a("s_nop 0")
    reduce_set(accof[lastkind], lastkind)
    a("s_waitcnt lgkmcnt(0)\ns_barrier")
    stamp(6)
    if stamps: a("s_mov_b32 s71, s70\ns_mov_b32 s72, s70\ns_mov_b32 s73, s70")
    if dbglate:
        l_ = newlab("dl")
        a(f"s_cmp_lg_u32 s{sW}, 1\ns_cbranch_scc1 {l_}\ns_lshr_b32 s60, s2, 6\ns_and_b32 s61, s2, 63\ns_cmp_lg_u32 s61, 21\ns_cbranch_scc1 {l_}")
        a(f"s_lshl_b32 s60, s60, 4\ns_add_u32 s60, s60, 4\nv_mov_b32 v4, s60\nv_mov_b32 v8, s{(101 if dbgrc else 88)}\nv_mov_b32 v9, s87\nv_mov_b32 v10, s91\nv_mov_b32 v11, s92")
        a(f"s_mov_b64 exec, 1\nbuffer_store_dwordx4 v[8:11], v4, {srd(sDB)}, 0 offen\ns_mov_b64 exec, -1\n{l_}:")
    a(f"s_cmp_lg_u32 s{sW}, 0\ns_cbranch_scc1 L_fin")
    cm("wave 0: sum the 8 numerator rows and 8 denominators; lane l owns d = 2l, 2l+1")
    a(f"v_lshlrev_b32 v{vT0}, 3, v{vLANE}\nv_add_u32 v{vT0}, {KBASE}, v{vT0}\nv_mov_b32 v{vT1}, {KBASE}")
    rows = [w * KWAVE + s_ * 1024 + g * 512 for w in range(waves) for s_ in range(1) for g in range(2)]
    for i, off in enumerate(rows): a(f"ds_read_b64 {r2(vACC_C+2*i)}, v{vT0} offset:{off}")
    zs = [w * KWAVE + 2048 + g * 64 for w in range(waves) for g in range(2)]
    for i, off in enumerate(zs): a(f"ds_read_b32 v{vM[0]+i}, v{vT1} offset:{off}")
    a(f"s_mov_b32 s{sV}, s12\ns_mov_b32 s{sV+1}, s13\ns_mov_b32 s{sV+2}, 32768\ns_mov_b32 s{sV+3}, 0x20000")
    a("s_waitcnt lgkmcnt(0)")
    n = len(rows)
    step = 1
    while step < n:
        for i in range(0, n, 2*step):
            a(f"v_add_f32 v{vACC_C+2*i}, v{vACC_C+2*i}, v{vACC_C+2*(i+step)}\nv_add_f32 v{vACC_C+2*i+1}, v{vACC_C+2*i+1}, v{vACC_C+2*(i+step)+1}")
        step *= 2
    step = 1
    while step < len(zs):
        for i in range(0, len(zs), 2*step): a(f"v_add_f32 v{vM[0]+i}, v{vM[0]+i}, v{vM[0]+i+step}")
        step *= 2
    a(f"v_mov_b32 v{vS}, v{vACC_C}\nv_mov_b32 v{vS+1}, v{vACC_C+1}\nv_mov_b32 v{vS+2}, v{vM[0]}")
    def check():
        a(f"v_xor_b32 v{vT0}, v{vLOOK}, v{vLOOK+1}\nv_xor_b32 v{vT1}, v{vLOOK+2}, v{vLOOK+3}\nv_xor_b32 v{vT0}, v{vT0}, v{vT1}")
        a(f"v_cmp_eq_u32 vcc, s{sTAG}, v{vT0}\ns_nop 1\ns_cmp_eq_u64 vcc, exec")
    cm("hand-off with the workgroup that holds the other half of this head (granules carry the launch tag)")
    a("s_waitcnt vmcnt(0)")
    a(f"v_readfirstlane_b32 s{sTAG}, v{vFLAG}\ns_nop 3\ns_cmp_lg_u32 s{sTAG}, 0\ns_cbranch_scc1 L_havetag")
    cm("no tag seen (yet): propose one; the compare-and-swap returns the tag that counts")
    a("s_memrealtime s[56:57]\ns_waitcnt lgkmcnt(0)\ns_or_b32 s56, s56, 1")
    a(f"v_mov_b32 v{vFLAG+2}, s56\nv_mov_b32 v{vFLAG+3}, 0\nv_mov_b32 v{vT0}, 0\ns_mov_b64 exec, 1")
    a(f"buffer_atomic_cmpswap v[{vFLAG+2}:{vFLAG+3}], v{vT0}, {srd(sDB)}, 0 offen sc0\ns_waitcnt vmcnt(0)\ns_mov_b64 exec, -1")
    a(f"v_readfirstlane_b32 s{sTAG}, v{vFLAG+2}\ns_nop 3\ns_cmp_eq_u32 s{sTAG}, 0\ns_cselect_b32 s{sTAG}, s56, s{sTAG}")
    a("L_havetag:")
    check()
    a("s_cbranch_scc1 L_final")
    a(f"v_xor_b32 v{vT0}, v{vS}, v{vS+1}\nv_xor_b32 v{vT0}, v{vT0}, v{vS+2}\nv_xor_b32 v{vS+3}, s{sTAG}, v{vT0}")
    a(f"buffer_store_dwordx4 {r4(vS)}, v{vVO}, {srd(sWS)}, s{sOWN} offen sc1")
    if look2:
        cm("second look travels together with the publication")
        a(f"buffer_load_dwordx4 {r4(vLOOK)}, v{vVO}, {srd(sWS)}, s{sPAR} offen sc1")
    a("s_waitcnt vmcnt(0)")
    stamp(7)
    if look2:
        check()
        a("s_cbranch_scc1 L_final")
    cm("own slot is visible now: if this look misses the partner, the partner's look finds this slot")
    a(f"buffer_load_dwordx4 {r4(vLOOK)}, v{vVO}, {srd(sWS)}, s{sPAR} offen sc1\ns_waitcnt vmcnt(0)")
    stamp(8)
    check()
    a("s_cbranch_scc0 L_fin")
    a("L_final:")
    a(f"v_add_f32 v{vS}, v{vS}, v{vLOOK}\nv_add_f32 v{vS+1}, v{vS+1}, v{vLOOK+1}\nv_add_f32 v{vS+2}, v{vS+2}, v{vLOOK+2}")
    a(f"v_add_f32 v{vS+2}, s{sEPS}, v{vS+2}\nv_rcp_f32 v{vS+2}, v{vS+2}\ns_nop 0")
    a(f"v_mul_f32 v{vS}, v{vS}, v{vS+2}\nv_mul_f32 v{vS+1}, v{vS+1}, v{vS+2}\nv_cvt_pk_bf16_f32 v{vS}, v{vS}, v{vS+1}")
    a(f"v_lshlrev_b32 v{vT0}, 2, v{vLANE}")
    a(f"buffer_store_dword v{vS}, v{vT0}, {srd(sV)}, s19 offen")
    a("L_fin:")
    if stamps:
        a(f"s_mov_b32 s{sK}, s16\ns_mov_b32 s{sK+1}, s17\ns_mov_b32 s{sK+2}, {1<<20}\ns_mov_b32 s{sK+3}, 0x20000")
        a("s_waitcnt vmcnt(0)")
        stamp(9)
        if ctl == 'self': a("s_mov_b32 s67, s88\ns_mov_b32 s68, s87\ns_mov_b32 s71, s91\ns_mov_b32 s72, s92")
        a(f"s_mul_i32 s58, s2, {waves}\ns_add_u32 s58, s58, s{sW}\ns_lshl_b32 s58, s58, 6")
        for i in range(12): a(f"v_mov_b32 v{8+i}, s{64+i}")
        a(f"v_mov_b32 v20, s58\ns_mov_b64 exec, 1")
        for i in range(3): a(f"buffer_store_dwordx4 v[{8+4*i}:{11+4*i}], v20, {srd(sK)}, 0 offen offset:{16*i}")
    a("L_done:\ns_endpgm")
    a(f""".section .rodata,"a"
.p2align 6
.amdhsa_kernel {KN}
  .amdhsa_next_free_vgpr {nv}
  .amdhsa_next_free_sgpr 102
  .amdhsa_accum_offset {(nv+3)//4*4}
  .amdhsa_group_segment_fixed_size 0
  .amdhsa_kernarg_size 56
  .amdhsa_user_sgpr_count 2
  .amdhsa_user_sgpr_kernarg_segment_ptr 1
  .amdhsa_system_sgpr_workgroup_id_x 1
.end_amdhsa_kernel""")
    open(fn, "w").write(a.text())
    return fn
if __name__ == "__main__":
    import mk
    cfgs = eval(open(sys.argv[1]).read())
    for name, kw in cfgs.items():
        fn = gen(f"x_{name}.s", **kw); mk.build(fn)
        print(fn, kw)
```
